```python
import torch

def _softmax(x, axis=-1):
    return torch.softmax(x, dim=axis)
def _gelu(x):
    return torch.nn.functional.gelu(x, approximate="tanh")
def _silu(x):
    return torch.nn.functional.silu(x)
def _sigmoid(x):
    return torch.sigmoid(x)
def _layernorm(x, axis=-1, eps=1e-5):
    m = x.mean(dim=axis, keepdim=True)
    v = x.var(dim=axis, keepdim=True, unbiased=False)
    return (x - m) / torch.sqrt(v + eps)
def _scatter_add(tgt, idx, src, axis=0):
    return tgt.clone().index_add_(axis, idx, src)
def _segment_sum(src, seg, n):
    out = torch.zeros((n,) + src.shape[1:], dtype=src.dtype)
    return out.index_add_(0, seg, src)
def _pad(x, pw):
    flat = tuple(v for pair in reversed(pw) for v in pair)
    return torch.nn.functional.pad(x, flat)

kernel_name = 'gated_mix__ssm_conv_s4__spectral_gfnet__prompt'

def setup_inputs():

    _w = (lambda a: (lambda t: t.to(torch.bfloat16) if t.is_floating_point() else t)(torch.as_tensor(a)))
    def _A_setup():
        B, L, D, N = 1, 2048, 512, 128
        A_re = -(lambda _x: torch.exp(torch.as_tensor(_x)))((lambda *s: torch.randn(*s, dtype=torch.bfloat16) * 3.2)(D, N))
        A_im = torch.pi * (lambda *s: torch.randn(*s, dtype=torch.bfloat16) * 0.05)(D, N)
        B_re = (lambda *s: torch.randn(*s, dtype=torch.bfloat16) * 0.1)(D, N)
        B_im = (lambda *s: torch.randn(*s, dtype=torch.bfloat16) * 0.1)(D, N)
        C_re = (lambda *s: torch.randn(*s, dtype=torch.bfloat16) * 0.1)(D, N)
        C_im = (lambda *s: torch.randn(*s, dtype=torch.bfloat16) * 0.1)(D, N)
        log_dt = (lambda *s: torch.randn(*s, dtype=torch.bfloat16) * 0.05)(D) * 0.5 - 4.0
        Dskip = (lambda *s: torch.randn(*s, dtype=torch.bfloat16) * 0.05)(D)
        return {
            "u": _w((lambda *s: torch.randn(*s, dtype=torch.bfloat16) * 0.05)(B, L, D)),
            "A_re": _w(A_re),
            "A_im": _w(A_im),
            "B_re": _w(B_re),
            "B_im": _w(B_im),
            "C_re": _w(C_re),
            "C_im": _w(C_im),
            "log_dt": _w(log_dt),
            "Dskip": _w(Dskip),
        }
    _A_in = _A_setup()

    def _B_setup():
        B, S, D = 1, 2048, 512
        Df = D // 2 + 1
        return {
            "x": _w((lambda *s: torch.randn(*s, dtype=torch.bfloat16) * 0.05)(B, S, D)),
            "w_r": _w((lambda *s: torch.randn(*s, dtype=torch.bfloat16) * 0.8)(S, Df) * 0.02),
            "w_i": _w((lambda *s: torch.randn(*s, dtype=torch.bfloat16) * 0.8)(S, Df) * 0.02),
        }
    _B_in = _B_setup()

    return {
        "A_u": _A_in["u"],
        "A_A_re": _A_in["A_re"],
        "A_A_im": _A_in["A_im"],
        "A_B_re": _A_in["B_re"],
        "A_B_im": _A_in["B_im"],
        "A_C_re": _A_in["C_re"],
        "A_C_im": _A_in["C_im"],
        "A_log_dt": _A_in["log_dt"],
        "A_Dskip": _A_in["Dskip"],
        "B_x": _B_in["x"],
        "B_w_r": _B_in["w_r"],
        "B_w_i": _B_in["w_i"],
        "gate_w": _w((lambda *s: torch.randn(*s, dtype=torch.bfloat16) * 0.05)(512) * 16.0),
    }

def reference(A_u, A_A_re, A_A_im, A_B_re, A_B_im, A_C_re, A_C_im, A_log_dt, A_Dskip, B_x, B_w_r, B_w_i, gate_w):
    def _A_ref(u, A_re, A_im, B_re, B_im, C_re, C_im, log_dt, Dskip):
        Bsz, L, D = u.shape
        dt = torch.exp(log_dt)[:, None]
        A = A_re + 1j * A_im
        Bc = B_re + 1j * B_im
        Cc = C_re + 1j * C_im
        logdA = dt * A
        dB = dt * Bc
        l = (lambda x, dt: x.to(dt))(torch.arange(L), A_re.dtype)
        P = torch.exp(logdA[:, :, None] * l[None, None, :])
        K = torch.einsum("dn,dnl,dn->dl", Cc, P, dB).real
        L2 = 2 * L
        Kp = _pad(K, ((0, 0), (0, L)))
        up = (lambda x, *d: x.permute(*d))(u, 0, 2, 1)
        up = _pad(up, ((0, 0), (0, 0), (0, L)))
        Kf = (lambda x, axes=(-2,-1): torch.fft.rfft2(x.float(), dim=axes))(Kp[:, None, :], axes=(-2, -1))
        Uf = (lambda x, axes=(-2,-1): torch.fft.rfft2(x.float(), dim=axes))(up[:, :, None, :], axes=(-2, -1))
        Yf = Uf * Kf[None, :, :, :]
        y = (lambda x, s, axes=(-2,-1): torch.fft.irfft2(x, s=s, dim=axes).to(torch.bfloat16))(Yf, (1, L2), axes=(-2, -1))[:, :, 0, :L]
        y = (lambda x, *d: x.permute(*d))(y, 0, 2, 1) + u * Dskip[None, None, :]
        return y

    def _B_ref(x, w_r, w_i):
        B, S, D = x.shape
        X = (lambda x, axes=(-2,-1): torch.fft.rfft2(x.float(), dim=axes))(x, axes=(-2, -1))
        W = w_r + 1j * w_i
        X = X * W
        y = (lambda x, s, axes=(-2,-1): torch.fft.irfft2(x, s=s, dim=axes).to(torch.bfloat16))(X, (S, D), axes=(-2, -1))
        return y

    x = A_u
    g = _sigmoid((x * gate_w).sum(-1, keepdims=True))
    a = _A_ref(x, A_A_re, A_A_im, A_B_re, A_B_im, A_C_re, A_C_im, A_log_dt, A_Dskip)
    b = _B_ref(x, B_w_r, B_w_i)
    return g * a + (1 - g) * b
```

```python
import re

TRANS = ('v_exp_f32', 'v_log_f32', 'v_rcp_f32', 'v_rsq_f32', 'v_sqrt_f32', 'v_sin_f32', 'v_cos_f32')

def parse_regs(tok):
    tok = tok.strip()
    tok = tok.lstrip('-')
    if tok.startswith('abs(') or tok.startswith('|'):
        tok = tok.strip('abs()|')
    m = re.fullmatch(r'([vsa])(\d+)', tok)
    if m: return [(m.group(1), int(m.group(2)))]
    m = re.fullmatch(r'([vsa])\[(\d+):(\d+)\]', tok)
    if m: return [(m.group(1), i) for i in range(int(m.group(2)), int(m.group(3)) + 1)]
    if tok in ('vcc', 'vcc_lo', 'vcc_hi'): return [('vcc', 0)]
    if tok in ('exec', 'exec_lo', 'exec_hi'): return [('exec', 0)]
    if tok == 'm0': return [('m0', 0)]
    return []

class Ins:
    def __init__(self, text):
        self.text = text
        t = text.split(';')[0].strip()
        self.label = t.endswith(':')
        self.op = t.split()[0] if t and not self.label else ''
        rest = t[len(self.op):].strip()
        ops, cur, depth = [], '', 0
        for ch in rest:
            if ch == '[': depth += 1
            if ch == ']': depth -= 1
            if ch == ',' and depth == 0:
                ops.append(cur); cur = ''
            else: cur += ch
        if cur.strip(): ops.append(cur)
        self.mods = ''
        if ops:
            parts = ops[-1].strip().split(None, 1)
            ops[-1] = parts[0]
            self.mods = parts[1] if len(parts) > 1 else ''
        self.ops = [o.strip() for o in ops]
        op = self.op
        self.mfma = op.startswith('v_mfma')
        self.valu = op.startswith('v_') and not self.mfma
        self.ds = op.startswith('ds_')
        self.vmem = op.startswith('buffer_') or op.startswith('global_')
        self.smem = op.startswith('s_load') or op.startswith('s_memtime') or op.startswith('s_memrealtime')
        self.salu = op.startswith('s_') and not self.smem
        self.trans = op.replace('_e32', '').replace('_e64', '') in TRANS
        self.dpp = '_dpp' in op or any(k in self.mods for k in ('row_sh', 'row_ror', 'quad_perm', 'wave_sh', 'row_bcast', 'row_mirror', 'row_half'))
        self.dot = op.startswith('v_dot')
        self.perml = op.startswith('v_permlane')
        self.rdlane = op.startswith('v_readlane') or op.startswith('v_readfirstlane')
        R = [parse_regs(o) for o in self.ops]
        w, r = [], []
        self.loaddst = []
        self.srcc = []
        if self.mfma:
            w = R[0]; r = R[1] + R[2] + R[3]; self.srcab = R[1] + R[2]; self.srcc = R[3]
            self.passes = 8 if '32x32x16' in op else 4
        elif self.valu:
            if op.startswith('v_swap') or self.perml:
                w = R[0] + R[1]; r = R[0] + R[1]
            elif op.startswith('v_cmpx'):
                w = R[0] + [('exec', 0)]; r = sum(R[1:], [])
            elif re.match(r'v_(add|sub|subrev|addc|subb)_co', op):
                w = R[0] + R[1]; r = sum(R[2:], [])
            else:
                w = R[0]; r = sum(R[1:], [])
                if op.startswith('v_fmac') or op.startswith('v_dot2c') or op.startswith('v_writelane') or self.dpp or 'sdwa' in op:
                    r = r + R[0]
                if op.startswith('v_cndmask') and len(self.ops) == 3: r = r + [('vcc', 0)]
        elif self.ds:
            if op.startswith('ds_read') or op.startswith('ds_bpermute') or op.startswith('ds_swizzle') or '_rtn' in op:
                self.loaddst = R[0]; w = R[0]; r = sum(R[1:], [])
            else:
                r = sum(R, [])
        elif self.vmem:
            if '_load' in op:
                self.loaddst = R[0]; w = R[0]; r = sum(R[1:], [])
                if 'd16' in op: r = r + R[0]
            else:
                r = sum(R, [])
            self.widestore = ('store' in op) and ('x3' in op or 'x4' in op)
            self.stdata = (R[0] if op.startswith('buffer') else R[1]) if 'store' in op else []
        elif self.smem:
            self.loaddst = R[0]; w = R[0]; r = sum(R[1:], [])
        elif self.salu:
            if op.startswith('s_cmp') or op.startswith('s_cbranch') or op.startswith('s_bitcmp') or op in ('s_branch', 's_barrier', 's_nop', 's_waitcnt', 's_endpgm', 's_sleep', 's_setprio'):
                r = sum(R, [])
                if 'vcc' in op: r = r + [('vcc', 0)]
                if 'exec' in op: r = r + [('exec', 0)]
            elif 'saveexec' in op:
                w = R[0] + [('exec', 0)]; r = R[1] + [('exec', 0)]
            else:
                w = R[0] if R else []; r = sum(R[1:], [])
        self.w = set(w); self.r = set(r)

    def states(self):
        if self.op == 's_nop': return int(self.ops[0], 0) + 1
        if self.label or not self.op: return 0
        return 1

def need_states(p, c):
    n = 0
    vw = {x for x in p.w if x[0] in 'va'}
    sw = {x for x in p.w if x[0] in ('s', 'vcc')}
    if p.valu:
        if c.mfma and (vw & c.r): n = max(n, 2)
        if c.valu and c.dpp and (vw & c.r): n = max(n, 2)
        if c.rdlane and (vw & c.r): n = max(n, 1)
        if c.perml and (vw & c.r): n = max(n, 2)
        if p.trans and c.valu and not c.trans and (vw & c.r): n = max(n, 1)
        if p.trans and (c.mfma or c.ds or c.vmem) and (vw & c.r): n = max(n, 2 if c.mfma else 1)
        if p.dot and (c.valu or c.mfma or c.ds or c.vmem) and (vw & (c.r | c.w)):
            if not (c.op == p.op and not (vw & set(parse_regs(c.ops[1]) + parse_regs(c.ops[2])))):
                n = max(n, 3)
        if sw & c.r:
            if c.valu: n = max(n, 4 if c.op.startswith('v_readlane') or c.op.startswith('v_writelane') else 2)
            if c.vmem: n = max(n, 5)
            if c.salu or c.smem: n = max(n, 1)
        if ('exec', 0) in p.w:
            if c.dpp: n = max(n, 5)
            if c.rdlane or c.perml or c.mfma: n = max(n, 4)
            if c.salu and ('exec', 0) in c.r: n = max(n, 1)
    if p.mfma:
        big = 12 if p.passes == 8 else 8
        if c.mfma:
            if p.w & set(c.srcab): n = max(n, big)
            sc = set(c.srcc)
            if p.w & sc:
                if not (sc == p.w and c.passes == p.passes): n = max(n, 10 if p.passes == 8 else 6)
            elif p.w & c.w: n = max(n, big)
        elif c.valu or c.ds or c.vmem:
            if p.w & (c.r | c.w): n = max(n, big)
        if (c.valu or c.loaddst) and (set(p.srcc) & c.w): n = max(n, 7 if p.passes == 8 else 3)
    if p.vmem and getattr(p, 'widestore', False):
        if (c.valu or c.mfma) and (set(p.stdata) & c.w): n = max(n, 2)
        elif c.loaddst and (set(p.stdata) & c.w): n = max(n, 1)
    if p.salu and ('m0', 0) in p.w and (c.vmem or c.ds): n = max(n, 1)
    return n

class Asm:
    def __init__(self):
        self.out = []
        self.vm = []
        self.lg = []
        self.nnop = 0
    def raw(self, text):
        self.out.append(Ins('; ' + text) if False else RawLine(text))
    def __call__(self, text):
        for line in text.strip('\n').split('\n'):
            s = line.strip()
            if not s or s.startswith(';'):
                if s: self.out.append(RawLine('    ' + s))
                continue
            self.emit(Ins(s))
    def _waits(self, ins):
        touched = ins.r | ins.w
        nv = None
        for i, d in enumerate(self.vm):
            if d & touched: nv = len(self.vm) - 1 - i
        nl = None
        for i, (d, sm) in enumerate(self.lg):
            if d & touched:
                nl = len(self.lg) - 1 - i
        if nl is not None and any(sm for _, sm in self.lg): nl = 0
        parts = []
        if nv is not None: parts.append(f'vmcnt({min(nv,63)})')
        if nl is not None: parts.append(f'lgkmcnt({min(nl,15)})')
        if parts: self.emit(Ins('s_waitcnt ' + ' '.join(parts)))
    def emit(self, ins):
        if ins.label:
            self.out.append(ins); return
        if ins.op == 's_waitcnt':
            t = ins.text
            m = re.search(r'vmcnt\((\d+)\)', t)
            if m:
                n = int(m.group(1)); self.vm = self.vm[len(self.vm) - n:] if n < len(self.vm) else self.vm
                if n == 0: self.vm = []
            m = re.search(r'lgkmcnt\((\d+)\)', t)
            if m:
                n = int(m.group(1))
                if n == 0: self.lg = []
                elif n < len(self.lg): self.lg = self.lg[len(self.lg) - n:]
            self.out.append(ins); return
        self._waits(ins)
        need, dist = 0, 0
        for p in reversed(self.out):
            if isinstance(p, RawLine): continue
            if dist > 24: break
            if not p.label:
                k = need_states(p, ins) - dist
                if k > need: need = k
            dist += p.states()
        while need > 0:
            k = min(need, 16)
            self.out.append(Ins(f's_nop {k-1}')); need -= k; self.nnop += 1
        self.out.append(ins)
        if ins.vmem: self.vm.append(set(ins.loaddst))
        if ins.ds: self.lg.append((set(ins.loaddst), False))
        if ins.smem: self.lg.append((set(ins.loaddst), True))
        if len(self.lg) > 15 and not any(sm for _, sm in self.lg):
            pass
    def forget(self):
        self.vm = []; self.lg = []
    def barrier(self):
        if self.lg: self('s_waitcnt lgkmcnt(0)')
        self('s_barrier')
    def text(self):
        o = []
        for i in self.out:
            if isinstance(i, RawLine): o.append(i.text)
            elif i.label: o.append(i.text)
            else: o.append('    ' + i.text)
        return '\n'.join(o) + '\n'

class RawLine:
    def __init__(self, text): self.text = text

class Regs:
    def __init__(self, kind, lo, hi):
        self.kind, self.free, self.hi = kind, set(range(lo, hi)), lo
        self.named = {}
    def alloc(self, n=1, align=None):
        if align is None: align = 1 if n == 1 else (2 if self.kind == 'v' else min(4, 1 << (n - 1).bit_length()))
        b = 0
        while True:
            if b % align == 0 and all((b + i) in self.free for i in range(n)):
                for i in range(n): self.free.discard(b + i)
                self.hi = max(self.hi, b + n)
                return R(self.kind, b, n)
            b += 1
            if b > 600: raise RuntimeError('out of registers')
    def release(self, *rs):
        for r in rs:
            for i in range(r.n):
                assert (r.b + i) not in self.free
                self.free.add(r.b + i)

class R:
    def __init__(self, kind, b, n): self.kind, self.b, self.n = kind, b, n
    def __getitem__(self, i):
        if isinstance(i, slice):
            st = i.start or 0; en = i.stop if i.stop is not None else self.n
            assert 0 <= st < en <= self.n, (st, en, self.n)
            return R(self.kind, self.b + st, en - st)
        assert 0 <= i < self.n, (i, self.n)
        return R(self.kind, self.b + i, 1)
    def __str__(self):
        return f'{self.kind}{self.b}' if self.n == 1 else f'{self.kind}[{self.b}:{self.b+self.n-1}]'
    __repr__ = __str__
    def __format__(self, spec): return str(self)
```

```python
import sys, struct, math
from asmlib import Asm, Regs, R

KNAME = 'gated_mix__ssm_conv_s4__spectral_gfnet__prompt_kernel'
OPT = dict(a.split('=') for a in sys.argv[2:] if '=' in a)
def opt(k, d=0): return int(OPT.get(k, d))
STAMP = opt('stamp')

def f2u(x): return '0x%08x' % struct.unpack('<I', struct.pack('<f', x))[0]

XT_B, XT_S = 0x001000, 12416
T1_B, T1_S = 0x310000, 11392
T2_B, T2_S = 0x5E0000, 16512
AT_B, AT_S = 0x8B0000, 12416
WS_USED = 0xC00000
ST_B = 0xB00000 + 0xC0000
SPIN = 20000
LDS_BYTES = 78400

a = Asm()
S = Regs('s', 3, 100)
sWS = S.alloc(4); sTag = S.alloc(1); sIdx = S.alloc(1); sW8 = S.alloc(1); sWave = S.alloc(1)
sT = S.alloc(1); sT2 = S.alloc(1); sSpin = S.alloc(1)
sPc = S.alloc(2)
sStamp = S.alloc(2)
nstamp = [0]

def stamp(role, V=None):
    if not STAMP: return
    n = nstamp[0]; nstamp[0] += 1
    a(f's_memrealtime {sStamp}')
    a('s_waitcnt lgkmcnt(0)')
    a(f'v_writelane_b32 v255, {sStamp[0]}, {n}')

def stamp_flush():
    if not STAMP: return
    a(f'''
    s_lshl_b32 {sT}, s2, 2
    s_add_u32 {sT}, {sT}, {sWave}
    s_lshl_b32 {sT}, {sT}, 6
    s_add_u32 {sT}, {sT}, {ST_B}
    v_and_b32 v254, 63, v0
    v_lshlrev_b32 v254, 2, v254
    s_mov_b64 exec, 0xffff
    buffer_store_dword v255, v254, {sWS}, {sT} offen
    s_mov_b64 exec, -1
    ''')

lab = [0]
def newlab(p):
    lab[0] += 1
    return f'L_{p}{lab[0]}'

def check_retry(loads, tags, vt, vt2):
    L, D = newlab('chk'), newlab('got')
    a(f's_mov_b32 {sSpin}, 0')
    a(f'{L}:')
    a('s_waitcnt vmcnt(0)')
    a(f'v_xor_b32 {vt}, {sTag}, {tags[0]}')
    a(f'v_xor_b32 {vt2}, {sTag}, {tags[1]}')
    if len(tags) == 3:
        a(f'v_xor_b32 {tags[2]}, {sTag}, {tags[2]}')
        a(f'v_or3_b32 {vt}, {vt}, {vt2}, {tags[2]}')
    else:
        a(f'v_xor_b32 {tags[2]}, {sTag}, {tags[2]}')
        a(f'v_xor_b32 {tags[3]}, {sTag}, {tags[3]}')
        a(f'v_or3_b32 {vt}, {vt}, {vt2}, {tags[2]}')
        a(f'v_or_b32 {vt}, {vt}, {tags[3]}')
    a(f'v_cmpx_ne_u32 vcc, 0, {vt}')
    a(f's_cbranch_execz {D}')
    for l in loads: a(l)
    a(f's_add_u32 {sSpin}, {sSpin}, 1')
    a(f's_cmp_lt_u32 {sSpin}, {SPIN}')
    a(f's_cbranch_scc1 {L}')
    a('s_waitcnt vmcnt(0)')
    a(f'{D}:')
    a('s_mov_b64 exec, -1')
    a.forget_vm()

Asm.forget_vm = lambda self: setattr(self, 'vm', [])

def cmul(d, p, z):
    return [f'v_pk_mul_f32 {d}, {p}, {z} op_sel_hi:[0,1]',
            f'v_pk_fma_f32 {d}, {p}, {z}, {d} op_sel:[1,1,0] op_sel_hi:[1,0,1] neg_lo:[1,0,0]']

def twiddle(re, im, C, Sn, tre, tim, out, sign):
    o = []
    for h in (0, 2):
        s = slice(h, h + 2)
        o.append(f'v_pk_mul_f32 {tre[s]}, {re[s]}, {C[s]}')
        o.append(f'v_pk_mul_f32 {tim[s]}, {im[s]}, {C[s]}')
    for h in (0, 2):
        s = slice(h, h + 2)
        n1 = 'neg_lo:[1,0,0] neg_hi:[1,0,0]' if sign > 0 else ''
        n2 = '' if sign > 0 else 'neg_lo:[1,0,0] neg_hi:[1,0,0]'
        o.append(f'v_pk_fma_f32 {tre[s]}, {im[s]}, {Sn[s]}, {tre[s]} {n1}')
        o.append(f'v_pk_fma_f32 {tim[s]}, {re[s]}, {Sn[s]}, {tim[s]} {n2}')
    for r in range(4):
        o.append(f'v_cvt_pk_bf16_f32 {out[r]}, {tre[r]}, {tim[r]}')
    return o

def emit(lst):
    for x in lst: a(x)

def mf16(d, A, B, c): return f'v_mfma_f32_16x16x32_bf16 {d}, {A}, {B}, {c}'
def mf32(d, A, B, c): return f'v_mfma_f32_32x32x16_bf16 {d}, {A}, {B}, {c}'

a(f'''
s_cmp_ge_u32 s2, 512
s_cbranch_scc1 L_end
s_load_dwordx2 {sWS[0:2]}, s[0:1], 120
s_getpc_b64 {sPc}
L_pcref:
s_mov_b32 {sWS[2]}, {WS_USED if not STAMP else 0x1000000}
s_mov_b32 {sWS[3]}, 0x20000
s_and_b32 {sW8}, s2, 7
s_bfe_u32 {sT}, s2, 0x50003
s_lshl_b32 {sIdx}, {sW8}, 5
s_add_u32 {sIdx}, {sIdx}, {sT}
v_lshrrev_b32 v1, 6, v0
s_cmp_ge_u32 s2, 256
v_readfirstlane_b32 {sWave}, v1
s_cbranch_scc1 L_conv
''')

V = Regs('v', 1, 250)
sX = S.alloc(4); sWr = S.alloc(4); sWi = S.alloc(4); sOut = S.alloc(4); sGw = S.alloc(2)
sOff = S.alloc(8)
sGrp = S.alloc(1); sP1 = S.alloc(1); sE = S.alloc(1); sM = S.alloc(1); sH = S.alloc(2); sG = S.alloc(16)
sK = S.alloc(4)
ROWS, T1IMG, WIMG, GPART, GIN, T2IMG, T2IN, YROW = 0, 8192, 20480, 36864, 0, 20480, 0, 20480
GIN_S = 3104

a(f'''
s_setprio 3
s_load_dwordx2 {sX[0:2]}, s[0:1], 0
s_load_dwordx2 {sWr[0:2]}, s[0:1], 80
s_load_dwordx2 {sWi[0:2]}, s[0:1], 88
s_load_dwordx2 {sGw}, s[0:1], 96
s_load_dwordx2 {sOut[0:2]}, s[0:1], 104
s_mov_b32 {sX[2]}, 0x200000
s_mov_b32 {sX[3]}, 0x20000
s_mov_b32 {sOut[2]}, 0x200000
s_mov_b32 {sOut[3]}, 0x20000
s_mov_b32 {sWr[2]}, 1052672
s_mov_b32 {sWr[3]}, 0x20000
s_mov_b32 {sWi[2]}, 1052672
s_mov_b32 {sWi[3]}, 0x20000
''')
for i in range(1, 8): a(f's_mov_b32 {sOff[i]}, {i*262144}')
XU = V.alloc(12, 4); X = [XU[s + s // 3] for s in range(8)]
GW = V.alloc(1); vT4 = V.alloc(1); vXo = V.alloc(1)
WR = V.alloc(8, 4); WI = V.alloc(8, 4); vWo = V.alloc(1)
l15 = V.alloc(1); vg = V.alloc(1); vlane = V.alloc(1)
a(f'''
s_lshl_b32 {sT}, {sIdx}, 10
v_lshlrev_b32 {vT4}, 2, v0
v_add_u32 {vXo}, {sT}, {vT4}
s_lshr_b32 {sGrp}, s2, 3
s_lshr_b32 {sP1}, {sW8}, 1
s_sub_u32 {sT}, 0, {sP1}
s_cmp_eq_u32 {sW8}, 1
s_cselect_b32 {sT}, 4, {sT}
s_bitcmp1_b32 {sW8}, 0
s_cselect_b32 {sP1}, {sT}, {sP1}
v_lshlrev_b32 {vWo}, 3, v0
v_add_u32 {vWo}, {sP1}, {vWo}
v_and_b32 {vWo}, 2047, {vWo}
v_mul_u32_u24 {vWo}, 514, {vWo}
s_mul_i32 {sT}, {sGrp}, 24
s_cmp_ge_u32 {sGrp}, 22
s_cmov_b32 {sT}, 0x40000000
v_add_u32 {vWo}, {sT}, {vWo}
v_and_b32 {vWo}, -4, {vWo}
v_and_b32 {vlane}, 63, v0
v_and_b32 {l15}, 15, v0
v_bfe_u32 {vg}, v0, 4, 2
s_waitcnt lgkmcnt(0)
''')
for s1 in range(8):
    a(f'buffer_load_dword {X[s1]}, {vXo}, {sX}, {sOff[s1] if s1 else 0} offen')
a(f's_load_dword {sE}, {sWS[0:2]}, 0')
a(f'global_load_dword {GW}, {vT4}, {sGw}')
a(f'''
buffer_load_dwordx4 {WR[0:4]}, {vWo}, {sWr}, 0 offen
buffer_load_dwordx3 {WR[4:7]}, {vWo}, {sWr}, 0 offen offset:16
buffer_load_dwordx4 {WI[0:4]}, {vWo}, {sWi}, 0 offen
buffer_load_dwordx3 {WI[4:7]}, {vWo}, {sWi}, 0 offen offset:16
''')
stamp('f')

fl = V.alloc(1); fg = V.alloc(1); f1 = V.alloc(1); fb = V.alloc(1)
tc = V.alloc(8, 2); ts = V.alloc(8, 2); rv = V.alloc(8, 2)
B1re = [V.alloc(4, 4) for _ in range(2)]; B1im = [V.alloc(4, 4) for _ in range(2)]
TWc = [V.alloc(4, 2) for _ in range(2)]; TWs = [V.alloc(4, 2) for _ in range(2)]
M1 = V.alloc(4, 4); M2 = V.alloc(4, 4); M3 = V.alloc(4, 4); M4 = V.alloc(4, 4); MN1 = V.alloc(4, 4); MN2 = V.alloc(4, 4)
aTk = [[V.alloc(1) for j in range(2)] for cb in range(2)]; aNy = V.alloc(1); aTr = V.alloc(1); aRd = V.alloc(1)
vSt = V.alloc(1); vSt3 = V.alloc(1)
a(f'''
v_cvt_f32_u32 {fl}, {l15}
v_cvt_f32_u32 {fg}, {vg}
v_mul_f32 {fg}, 4.0, {fg}
v_mul_f32 {f1}, {f2u(1/32)}, {fl}
v_mul_f32 {fb}, {f1}, {fg}
''')
for e in range(8):
    k = 16 * (e >> 2) + (e & 3)
    a(f'v_fmamk_f32 {rv[e]}, {f1}, {f2u(float(k))}, {fb}')
for e in range(8):
    a(f'v_cos_f32 {tc[e]}, {rv[e]}'); a(f'v_sin_f32 {ts[e]}, {rv[e]}')
for i in range(4):
    a(f'v_cvt_pk_bf16_f32 {B1re[0][i]}, {tc[2*i]}, {tc[2*i+1]}')
    a(f'v_cvt_pk_bf16_f32 {B1im[0][i]}, -{ts[2*i]}, -{ts[2*i+1]}')
for i in range(4):
    a(f'v_xor_b32 {B1re[1][i]}, 0x80000000, {B1re[0][i]}')
    a(f'v_xor_b32 {B1im[1][i]}, 0x80000000, {B1im[0][i]}')
for cb in range(2):
    if cb == 0: a(f'v_mul_f32 {f1}, {f2u(1/512)}, {fl}')
    else: a(f'v_add_f32 {f1}, {f2u(16/512)}, {f1}')
    a(f'v_mul_f32 {fb}, {f1}, {fg}')
    for r in range(4): a(f'v_fmamk_f32 {rv[4*cb+r]}, {f1}, {f2u(float(r))}, {fb}')
for cb in range(2):
    for r in range(4):
        a(f'v_cos_f32 {TWc[cb][r]}, {rv[4*cb+r]}'); a(f'v_sin_f32 {TWs[cb][r]}, {rv[4*cb+r]}')
a(f'''
v_lshrrev_b32 {f1}, 1, {l15}
v_and_b32 {fb}, 1, {l15}
v_cvt_f32_u32 {f1}, {f1}
v_cvt_f32_u32 {fb}, {fb}
v_mul_f32 {f1}, {f2u(1/16)}, {f1}
v_mul_f32 {fb}, 0.25, {fb} ; placeholder
''') if False else None
a(f'''
v_lshrrev_b32 {f1}, 1, {l15}
v_and_b32 {fb}, 1, {l15}
v_cvt_f32_u32 {f1}, {f1}
v_cvt_f32_u32 {fb}, {fb}
v_mul_f32 {f1}, {f2u(1/16)}, {f1}
v_mul_f32 {fb}, {f2u(0.25)}, {fb}
v_fmac_f32 {fb}, {f1}, {fg}
s_cmp_lg_u32 {sWave}, 0
s_cselect_b32 {sM}, -1, 0
''')
for r in range(4): a(f'v_fmamk_f32 {rv[r]}, {f1}, {f2u(float(r))}, {fb}')
for r in range(4):
    a(f'v_cos_f32 {tc[r]}, {rv[r]}'); a(f'v_sin_f32 {ts[r]}, {rv[r]}')
for r in range(4):
    a(f'v_cvt_pk_bf16_f32 {M1[r]}, {tc[r]}, {ts[r]}')
    a(f'v_cvt_pk_bf16_f32 {M2[r]}, {ts[r]}, -{tc[r]}')
    a(f'v_cvt_pk_bf16_f32 {M4[r]}, -{ts[r]}, {tc[r]}')
for r in range(4):
    a(f'v_and_b32 {M2[r]}, {sM}, {M2[r]}')
    a(f'v_and_b32 {M3[r]}, {sM}, {M1[r]}')
    a(f'v_bfi_b32 {M4[r]}, {sM}, {M4[r]}, {M1[r]}')
a(f'''
s_cmp_lg_u32 {sWave}, 0
s_cselect_b32 {sT}, 0x11, 0x01
s_cselect_b32 {sT2}, 0xc4, 0x10
v_lshlrev_b32 {f1}, 1, {l15}
v_bfe_i32 {tc[0]}, {sT}, {f1}, 2
v_bfe_i32 {tc[1]}, {sT2}, {f1}, 2
v_cvt_f32_i32 {tc[0]}, {tc[0]}
v_cvt_f32_i32 {tc[1]}, {tc[1]}
v_lshrrev_b32 {MN1[0]}, 16, {tc[0]}
v_lshrrev_b32 {MN2[0]}, 16, {tc[1]}
v_xor_b32 {MN1[1]}, 0x8000, {MN1[0]}
v_xor_b32 {MN2[1]}, 0x8000, {MN2[0]}
v_mov_b32 {MN1[2]}, {MN1[0]}
v_mov_b32 {MN2[2]}, {MN2[0]}
v_mov_b32 {MN1[3]}, {MN1[1]}
v_mov_b32 {MN2[3]}, {MN2[1]}
''')
a(f'''
s_mul_i32 {sT}, {sWave}, 2816
s_add_u32 {sT}, {sT}, {T1IMG}
v_lshl_add_u32 {f1}, {vg}, 6, {l15}
''')
for cb in range(2):
    for j in range(2):
        k0 = 16 * cb + 32 * j
        a(f'v_add_u32 {fb}, {k0}, {f1}')
        a(f'v_mul_u32_u24 {aTk[cb][j]}, 171, {fb}')
        a(f'v_lshrrev_b32 {aTk[cb][j]}, 9, {aTk[cb][j]}')
        a(f'v_add_u32 {fb}, {fb}, {aTk[cb][j]}')
        a(f'v_lshl_add_u32 {aTk[cb][j]}, {fb}, 2, {sT}')
a(f'''
v_min_u32 {aNy}, 1, {vlane}
v_add_u32 {aNy}, 341, {aNy}
v_lshl_add_u32 {aNy}, {aNy}, 2, {sT}
s_lshl_b32 {sT}, {sWave}, 11
v_lshl_add_u32 {aTr}, {vlane}, 3, {sT}
v_lshlrev_b32 {aRd}, 4, v0
s_mul_i32 {sT}, {sIdx}, {XT_S}
s_add_u32 {sK[0]}, {sT}, {XT_B}
s_add_u32 {sK[1]}, {sK[0]}, 4096
s_add_u32 {sK[2]}, {sK[0]}, 8192
s_mov_b32 {sH[0]}, {f2u(math.sqrt(0.5))}
s_waitcnt lgkmcnt(0)
s_mul_i32 {sTag}, {sE}, 0x9E3779B1
s_add_u32 {sTag}, {sTag}, 0x7F4A7C15
v_mov_b32 {XU[3]}, {sTag}
v_mov_b32 {XU[7]}, {sTag}
v_mov_b32 {XU[11]}, {sTag}
v_mov_b32 {XU[10]}, 0
s_cmp_eq_u32 {sWave}, 3
s_cselect_b32 {sT}, 0x40000000, 0
v_add_u32 {vSt3}, {sT}, {aRd}
''')
TU = V.alloc(12, 4)
for i in range(3): a(f'v_mov_b32 {TU[4*i+3]}, {sTag}')
stamp('f')

P = [V.alloc(2, 2) for _ in range(8)]; A_ = [V.alloc(2, 2) for _ in range(8)]
for s in (0, 4, 2, 6, 1, 5, 3, 7):
    a(f'v_lshlrev_b32 {P[s][0]}, 16, {X[s]}')
    a(f'v_and_b32 {P[s][1]}, 0xffff0000, {X[s]}')
for u in range(3):
    a(f'buffer_store_dwordx4 {XU[4*u:4*u+4]}, {aRd}, {sWS}, {sK[u]} offen sc1')
NEG1 = 'neg_lo:[0,1] neg_hi:[0,1]'
for i in (0, 2, 1, 3):
    a(f'v_pk_add_f32 {A_[i]}, {P[i]}, {P[i+4]}')
    a(f'v_pk_add_f32 {A_[i+4]}, {P[i]}, {P[i+4]} {NEG1}')
aa, bb = A_[:4], A_[4:]
c0, c1, Re2, Im2, t1, t2, Ra, Rb = P
O = V.alloc(8)
def row_out(q, src):
    a(f'v_cvt_pk_bf16_f32 {O[q]}, {src[0]}, {src[1]}')
    a(f'ds_write_b32 {vT4}, {O[q]} offset:{ROWS + q*1024}')
a(f'''
v_pk_add_f32 {c0}, {aa[0]}, {aa[2]}
v_pk_add_f32 {c1}, {aa[1]}, {aa[3]}
v_pk_add_f32 {Re2}, {aa[0]}, {aa[2]} {NEG1}
v_pk_add_f32 {Im2}, {aa[3]}, {aa[1]} {NEG1}
v_pk_add_f32 {t1}, {bb[1]}, {bb[3]} {NEG1}
v_pk_add_f32 {t2}, {bb[1]}, {bb[3]}
v_pk_add_f32 {Ra}, {c0}, {c1}
v_pk_add_f32 {Rb}, {c0}, {c1} {NEG1}
''')
row_out(4, Re2); row_out(5, Im2)
a(f'''
v_pk_fma_f32 {aa[0]}, {t1}, {sH}, {bb[0]} op_sel_hi:[1,0,1]
v_pk_fma_f32 {aa[1]}, {t2}, {sH}, {bb[2]} op_sel_hi:[1,0,1] neg_lo:[1,0,1] neg_hi:[1,0,1]
v_pk_fma_f32 {aa[2]}, {t1}, {sH}, {bb[0]} op_sel_hi:[1,0,1] neg_lo:[1,0,0] neg_hi:[1,0,0]
v_pk_fma_f32 {aa[3]}, {t2}, {sH}, {bb[2]} op_sel_hi:[1,0,1] neg_lo:[1,0,0] neg_hi:[1,0,0]
''')
row_out(0, Ra); row_out(1, Rb); row_out(2, aa[0]); row_out(3, aa[1]); row_out(6, aa[2]); row_out(7, aa[3])
a.barrier()
V.release(*P, *A_, O)
AF = [V.alloc(4, 4) for _ in range(2)]
for q in range(2):
    for i in range(2):
        a(f'ds_read_b64_tr_b16 {AF[q][2*i:2*i+2]}, {aTr} offset:{ROWS + q*1024 + i*512}')
Dre = [[V.alloc(4, 4) for cb in range(2)] for q in range(2)]; Dim = [[V.alloc(4, 4) for cb in range(2)] for q in range(2)]
for q in range(2):
    for cb in range(2):
        a(mf16(Dre[q][cb], AF[q], B1re[cb], 0)); a(mf16(Dim[q][cb], AF[q], B1im[cb], 0))
tre = V.alloc(4, 2); tim = V.alloc(4, 2)
BQ = [[V.alloc(4, 4) for cb in range(2)] for q in range(2)]
F = [[V.alloc(4, 4) for cb in range(2)] for s in range(2)]; FN = V.alloc(4, 4)
MM = [[M1, M2], [M3, M4]]
for q in range(2):
    for cb in range(2):
        emit(twiddle(Dre[q][cb], Dim[q][cb], TWc[cb], TWs[cb], tre, tim, BQ[q][cb], -1))
        for s in range(2):
            a(mf16(F[s][cb], MM[s][q], BQ[q][cb], 0 if q == 0 else F[s][cb]))
        if cb == 0: a(mf16(FN, (MN1, MN2)[q], BQ[q][0], 0 if q == 0 else FN))
o2 = V.alloc(10)
a(f'v_cvt_pk_bf16_f32 {o2[8]}, {FN[0]}, {FN[1]}'); a(f'v_cvt_pk_bf16_f32 {o2[9]}, {FN[2]}, {FN[3]}')
a(f'ds_write_b32 {aNy}, {o2[8]}'); a(f'ds_write_b32 {aNy}, {o2[9]} offset:1408')
for cb in range(2):
    for s in range(2):
        for j in range(2):
            o = o2[4*cb + 2*s + j]
            a(f'v_cvt_pk_bf16_f32 {o}, {F[s][cb][2*j]}, {F[s][cb][2*j+1]}')
            a(f'ds_write_b32 {aTk[cb][j]}, {o} offset:{1408*s}')
a(f'''
s_mul_i32 {sT}, {sIdx}, {T1_S}
s_add_u32 {sK[0]}, {sT}, {T1_B}
s_add_u32 {sK[1]}, {sK[0]}, 4096
s_add_u32 {sK[2]}, {sK[0]}, 8192
''')
a.barrier()
for i in range(3): a(f'ds_read_b96 {TU[4*i:4*i+3]}, {aRd} offset:{T1IMG + 4096*i}')
for i in range(3): a(f'buffer_store_dwordx4 {TU[4*i:4*i+4]}, {aRd if i < 2 else vSt3}, {sWS}, {sK[i]} offen sc1')
stamp('f')
V.release(*AF, *Dre[0], *Dre[1], *Dim[0], *Dim[1], *BQ[0], *BQ[1], *F[0], *F[1], FN, o2)
V.release(*B1re, *B1im, *TWc, *TWs, M1, M2, M3, M4, MN1, MN2, *aTk[0], *aTk[1], aNy, aTr)

G = V.alloc(8)
for s in range(8): a(f'v_dot2_f32_bf16 {G[s]}, {X[s]}, {GW}, 0')
gt = V.alloc(4)
for i in range(4):
    a(f'v_add_f32_dpp {gt[i]}, {G[2*i]}, {G[2*i]} row_ror:4 row_mask:0xf bank_mask:0x5')
    a(f'v_add_f32_dpp {gt[i]}, {G[2*i+1]}, {G[2*i+1]} row_ror:4 row_mask:0xf bank_mask:0xa')
for i in range(2):
    a(f'v_add_f32_dpp {G[i]}, {gt[2*i]}, {gt[2*i]} row_ror:8 row_mask:0xf bank_mask:0x3')
    a(f'v_add_f32_dpp {G[i]}, {gt[2*i+1]}, {gt[2*i+1]} row_ror:8 row_mask:0xf bank_mask:0xc')
a(f'''
v_permlane16_swap_b32 {G[0]}, {G[1]}
v_add_f32 {G[0]}, {G[0]}, {G[1]}
v_mov_b32 {G[1]}, {G[0]}
v_permlane32_swap_b32 {G[0]}, {G[1]}
v_add_f32 {G[0]}, {G[0]}, {G[1]}
v_add_f32_dpp {G[0]}, {G[0]}, {G[0]} quad_perm:[1,0,3,2] row_mask:0xf bank_mask:0xf
v_add_f32_dpp {G[0]}, {G[0]}, {G[0]} quad_perm:[2,3,0,1] row_mask:0xf bank_mask:0xf
v_and_b32 {G[2]}, 28, v0
s_lshl_b32 {sT}, {sWave}, 5
v_add_u32 {G[2]}, {sT}, {G[2]}
ds_write_b32 {G[2]}, {G[0]} offset:{GPART}
''')
CW = V.alloc(16, 4)
a(f'''
s_waitcnt vmcnt(6)
s_cmp_ge_u32 {sGrp}, 22
s_cbranch_scc1 L_now2
s_and_b32 {sT}, {sP1}, 1
s_lshl_b32 {sT}, {sT}, 4
s_mov_b32 {sT2}, 0x05040100
s_mov_b32 {sM}, 0x07060302
''')
for i in range(6):
    a(f'v_alignbit_b32 {WR[i]}, {WR[i+1]}, {WR[i]}, {sT}')
    a(f'v_alignbit_b32 {WI[i]}, {WI[i+1]}, {WI[i]}, {sT}')
for c in range(12):
    a(f'v_perm_b32 {CW[4*(c//3) + c%3]}, {WI[c//2]}, {WR[c//2]}, {sM if c & 1 else sT2}')
for u in range(4): a(f'ds_write_b96 {aRd}, {CW[4*u:4*u+3]} offset:{WIMG + 4096*u}')
a('L_now2:')
a('s_waitcnt lgkmcnt(0)')
a('s_barrier')
V.release(WR, WI, vWo, GW, gt)
a(f'''
v_and_b32 {G[2]}, 7, v0
v_lshlrev_b32 {G[2]}, 2, {G[2]}
''')
for i in range(4): a(f'ds_read_b32 {G[4+i]}, {G[2]} offset:{GPART + 32*i}')
a(f'''
v_add_f32 {G[4]}, {G[4]}, {G[5]}
v_add_f32 {G[6]}, {G[6]}, {G[7]}
v_add_f32 {G[4]}, {G[4]}, {G[6]}
v_mul_f32 {G[4]}, {f2u(-1/math.log(2))}, {G[4]}
v_exp_f32 {G[4]}, {G[4]}
v_add_f32 {G[4]}, 1.0, {G[4]}
v_rcp_f32 {G[4]}, {G[4]}
v_sub_f32 {G[5]}, 1.0, {G[4]}
''')
for s in range(8):
    a(f'v_readlane_b32 {sG[2*s]}, {G[4]}, {s}'); a(f'v_readlane_b32 {sG[2*s+1]}, {G[5]}, {s}')
V.release(G)
a(f'''
s_cmp_ge_u32 {sGrp}, 22
s_cbranch_scc1 L_p3
''')

WQ = CW
aWq = V.alloc(1)
a(f'''
v_lshl_add_u32 {aWq}, {vg}, 6, {l15}
v_lshlrev_b32 {aWq}, 4, {aWq}
s_lshl_b32 {sT}, {sWave}, 12
v_add_u32 {aWq}, {sT}, {aWq}
''')
for r in range(4): a(f'ds_read_b96 {WQ[4*r:4*r+3]}, {aWq} offset:{WIMG + 256*r}')
S1re = V.alloc(4, 4); S1im = V.alloc(4, 4); S2re = V.alloc(4, 4); S2im = V.alloc(4, 4)
S3re = V.alloc(4, 4); S3im = V.alloc(4, 4); S4re = V.alloc(4, 4); S4im = V.alloc(4, 4)
T1c = V.alloc(4, 2); T1s = V.alloc(4, 2); T2c = V.alloc(4, 2); T2s = V.alloc(4, 2)
Wc = [V.alloc(4, 2) for _ in range(3)]; Ws = [V.alloc(4, 2) for _ in range(3)]
fq = V.alloc(1); fp1 = V.alloc(1)
a(f'''
v_cvt_f32_i32 {fp1}, {sP1}
v_fmamk_f32 {fq}, {fl}, {f2u(8.0)}, {fp1}
''')
def angles(dst, f, base, n=4):
    for r in range(n): a(f'v_fmamk_f32 {dst[r]}, {f}, {f2u(float(r))}, {base}')
def cossin(c, s, ang, n=4):
    for r in range(n):
        a(f'v_cos_f32 {c[r]}, {ang[r]}'); a(f'v_sin_f32 {s[r]}, {ang[r]}')
a(f'v_mul_f32 {f1}, {f2u(1/128)}, {fq}'); a(f'v_mul_f32 {fb}, {f1}, {fg}')
angles(rv, f1, fb)
for r in range(4): a(f'v_mul_f32 {rv[4+r]}, {f2u(1/16)}, {rv[r]}')
cossin(tc, ts, rv); cossin(T1c, T1s, rv[4:8])
for r in range(4):
    a(f'v_cvt_pk_bf16_f32 {S1re[r]}, {tc[r]}, {ts[r]}'); a(f'v_cvt_pk_bf16_f32 {S1im[r]}, -{ts[r]}, {tc[r]}')
a(f'v_mul_f32 {f1}, {f2u(1/16)}, {fl}'); a(f'v_mul_f32 {fb}, {f1}, {fg}')
angles(rv, f1, fb); cossin(tc, ts, rv)
for r in range(4):
    a(f'v_cvt_pk_bf16_f32 {S2re[r]}, {tc[r]}, {ts[r]}'); a(f'v_cvt_pk_bf16_f32 {S2im[r]}, -{ts[r]}, {tc[r]}')
    a(f'v_cvt_pk_bf16_f32 {S3re[r]}, {tc[r]}, -{ts[r]}'); a(f'v_cvt_pk_bf16_f32 {S3im[r]}, {ts[r]}, {tc[r]}')
a(f'''
v_fmamk_f32 {fb}, {fg}, {f2u(8.0)}, {fp1}
v_mul_f32 {fb}, {fb}, {fl}
v_mul_f32 {fb}, {f2u(1/128)}, {fb}
''')
angles(rv, f1, fb)
for r in range(4): a(f'v_mul_f32 {rv[4+r]}, {f2u(1/16)}, {rv[r]}')
cossin(tc, ts, rv); cossin(T2c, T2s, rv[4:8])
for r in range(4):
    a(f'v_cvt_pk_bf16_f32 {S4re[r]}, {tc[r]}, -{ts[r]}'); a(f'v_cvt_pk_bf16_f32 {S4im[r]}, {ts[r]}, {tc[r]}')
for k in range(3):
    for r in range(4):
        a(f'v_lshlrev_b32 {Wc[k][r]}, 16, {WQ[4*r+k]}'); a(f'v_and_b32 {Ws[k][r]}, 0xffff0000, {WQ[4*r+k]}')
a(f'''
s_or_b32 {sT}, {sGrp}, {sWave}
s_cmp_eq_u32 {sT}, 0
s_cselect_b32 {sH[1]}, 0.5, 1.0
''')
for h in (0, 2):
    a(f'v_pk_mul_f32 {Wc[0][h:h+2]}, {Wc[0][h:h+2]}, {sH} op_sel:[0,1]')
    a(f'v_pk_mul_f32 {Ws[0][h:h+2]}, {Ws[0][h:h+2]}, {sH} op_sel:[0,1]')
aG = V.alloc(1); aGw = V.alloc(1); aGr = V.alloc(1); aUw = V.alloc(1); aUr = V.alloc(1)
L = CW
vt = V.alloc(1); vt2 = V.alloc(1)
a(f'''
v_bfe_u32 {vt}, v0, 2, 4
s_lshl_b32 {sT}, {sWave}, 6
v_add_u32 {vt}, {sT}, {vt}
v_mul_u32_u24 {aG}, {T1_S}, {vt}
v_and_b32 {vt}, 3, v0
v_lshl_add_u32 {aG}, {vt}, 4, {aG}
s_mul_i32 {sT}, {sW8}, 22
s_add_u32 {sT}, {sT}, {sGrp}
s_lshl_b32 {sK[0]}, {sT}, 6
s_add_u32 {sK[0]}, {sK[0]}, {T1_B}
s_add_u32 {sK[1]}, {sK[0]}, {16*T1_S}
s_add_u32 {sK[2]}, {sK[0]}, {32*T1_S}
s_add_u32 {sK[3]}, {sK[0]}, {48*T1_S}
s_mul_i32 {sE}, {sT}, {T2_S}
s_add_u32 {sE}, {sE}, {T2_B}
v_mul_u32_u24 {aGw}, {GIN_S}, {vt}
v_lshrrev_b32 {vt2}, 2, v0
v_lshl_add_u32 {aGw}, {vt2}, 4, {aGw}
s_mul_i32 {sT}, {sWave}, {GIN_S}
v_lshl_add_u32 {aGr}, {vlane}, 4, {sT}
v_lshrrev_b32 {aUw}, 1, {l15}
v_add_u32 {aUw}, {sWave}, {aUw}
v_and_b32 {aUw}, 3, {aUw}
v_lshlrev_b32 {aUw}, 4, {aUw}
v_lshl_add_u32 {aUr}, {vg}, 6, {l15}
v_lshl_add_u32 {aUw}, {aUr}, 6, {aUw}
v_lshrrev_b32 {aUr}, 3, v0
v_add_u32 {aUr}, {aUr}, v0
v_and_b32 {aUr}, 3, {aUr}
v_lshlrev_b32 {aUr}, 4, {aUr}
v_lshl_add_u32 {aUr}, {vt2}, 6, {aUr}
''')
UU = V.alloc(16, 4)
for r in range(4): a(f'v_mov_b32 {UU[4*r+3]}, {sTag}')
stamp('f')
loads = [f'buffer_load_dwordx4 {L[4*i:4*i+4]}, {aG}, {sWS}, {sK[i]} offen sc1' for i in range(4)]
a('s_waitcnt vmcnt(0)')
emit(loads)
check_retry(loads, [L[4*i+3] for i in range(4)], vt, vt2)
stamp('f')
for i in range(4):
    for j in range(i + 1, 4): a(f'v_swap_b32 {L[4*i+j]}, {L[4*j+i]}')
for k in range(3): a(f'ds_write_b128 {aGw}, {L[4*k:4*k+4]} offset:{GIN + 1024*k}')
a.barrier()
for k in range(3): a(f'ds_read_b128 {L[4*k:4*k+4]}, {aGr} offset:{GIN + 1024*k}')
D1 = [V.alloc(4, 4) for _ in range(3)]; D2 = [V.alloc(4, 4) for _ in range(3)]
Z = [L[4*k:4*k+4] for k in range(3)]
for k in range(3):
    a(mf16(D1[k], Z[k], S1re, 0)); a(mf16(D2[k], Z[k], S1im, 0))
for k in range(3):
    emit(twiddle(D1[k], D2[k], T1c, T1s, tre, tim, Z[k], -1))
    a(mf16(D1[k], S2re, Z[k], 0)); a(mf16(D2[k], S2im, Z[k], 0))
for k in range(3):
    emit(twiddle(D1[k], D2[k], Wc[k], Ws[k], tre, tim, Z[k], +1))
    a(mf16(D1[k], Z[k], S3re, 0)); a(mf16(D2[k], Z[k], S3im, 0))
for k in range(3):
    emit(twiddle(D1[k], D2[k], T2c, T2s, tre, tim, Z[k], +1))
    a(mf16(D1[k], S4re, Z[k], 0)); a(mf16(D2[k], S4im, Z[k], 0))
for k in range(3):
    for r in range(4): a(f'v_cvt_pk_bf16_f32 {UU[4*r+k]}, {D1[k][r]}, {D2[k][r]}')
for r in range(4): a(f'ds_write_b128 {aUw}, {UU[4*r:4*r+4]} offset:{T2IMG + 1024*r}')
a(f'''
s_add_u32 {sK[1]}, {sE}, 4096
s_add_u32 {sK[2]}, {sE}, 8192
s_add_u32 {sK[3]}, {sE}, 12288
''')
a.barrier()
for i in range(4): a(f'ds_read_b128 {UU[4*i:4*i+4]}, {aUr} offset:{T2IMG + 4096*i}')
for i in range(4): a(f'buffer_store_dwordx4 {UU[4*i:4*i+4]}, {aRd}, {sWS}, {sK[i] if i else sE} offen sc1')
stamp('f')
a('L_p3:')
V.release(S1re, S1im, S2re, S2im, S3re, S3im, S4re, S4im, T1c, T1s, T2c, T2s, *Wc, *Ws, fq, fp1, aG, aGw, aGr, aUw, aUr, aWq, *D1, *D2, UU)
if STAMP: nstamp[0] = 7

B1 = [[V.alloc(4, 4) for c in range(2)] for q in range(2)]
T3c = [V.alloc(4, 2) for _ in range(2)]; T3s = [V.alloc(4, 2) for _ in range(2)]
B2 = [[V.alloc(4, 4) for db in range(2)] for blk in range(2)]
AN = [V.alloc(4, 4) for q in range(2)]
NB = V.alloc(4, 4)
msk = V.alloc(2); dl = V.alloc(1)
a(f'''
s_cmp_lg_u32 {sWave}, 0
s_cselect_b32 {sM}, -1, 0
s_cselect_b32 {sT}, {f2u(0.25)}, 0
v_and_b32 {fb}, 1, {vg}
v_cvt_f32_u32 {fb}, {fb}
v_mul_f32 {f1}, {f2u(1/16)}, {fl}
v_mul_f32 {fb}, 4.0, {fb}
v_mul_f32 {fb}, {fb}, {f1}
v_bfe_i32 {msk[1]}, {vg}, 1, 1
v_not_b32 {msk[0]}, {msk[1]}
v_and_b32 {dl}, 0x80000000, {msk[1]}
v_or_b32 {dl}, {sT}, {dl}
v_or_b32 {msk[0]}, {sM}, {msk[0]}
v_or_b32 {msk[1]}, {sM}, {msk[1]}
''')
angles(rv, f1, fb)
for r in range(4): a(f'v_add_f32 {rv[4+r]}, {rv[r]}, {dl}')
cossin(tc, ts, rv, 8)
for q in range(2):
    for r in range(4):
        a(f'v_cvt_pk_bf16_f32 {B1[q][0][r]}, {tc[4*q+r]}, -{ts[4*q+r]}')
        a(f'v_cvt_pk_bf16_f32 {B1[q][1][r]}, {ts[4*q+r]}, {tc[4*q+r]}')
for q in range(2):
    for r in range(4):
        a(f'v_and_b32 {B1[q][0][r]}, {msk[q]}, {B1[q][0][r]}')
        a(f'v_and_b32 {B1[q][1][r]}, {msk[q]}, {B1[q][1][r]}')
a(f'v_mul_f32 {f1}, {f2u(1/512)}, {fl}'); a(f'v_mul_f32 {fb}, {f1}, {fg}')
angles(rv, f1, fb)
for r in range(4): a(f'v_fmamk_f32 {rv[4+r]}, {f1}, {f2u(16.0)}, {rv[r]}')
for blk in range(2): cossin(T3c[blk], T3s[blk], rv[4*blk:4*blk+4])
a(f's_mov_b32 {sH[1]}, {f2u(2.0**-19)}')
for blk in range(2):
    for h in (0, 2):
        a(f'v_pk_mul_f32 {T3c[blk][h:h+2]}, {T3c[blk][h:h+2]}, {sH} op_sel:[0,1]')
        a(f'v_pk_mul_f32 {T3s[blk][h:h+2]}, {T3s[blk][h:h+2]}, {sH} op_sel:[0,1]')
a(f'v_mul_f32 {f1}, {f2u(1/32)}, {fl}'); a(f'v_mul_f32 {fb}, {f1}, {fg}')
angles(rv, f1, fb); cossin(tc, ts, rv)
a(f'v_bfe_i32 {dl}, {l15}, 0, 1'); a(f'v_and_b32 {dl}, 0x80008000, {dl}')
for r in range(4): a(f'v_cvt_pk_bf16_f32 {B2[0][0][r]}, {tc[r]}, -{ts[r]}')
for r in range(4):
    a(f'v_xor_b32 {B2[1][0][r]}, {dl}, {B2[0][0][r]}')
    if r & 1: a(f'v_xor_b32 {B2[0][1][r]}, 0x80008000, {B2[0][0][r]}')
    else: a(f'v_mov_b32 {B2[0][1][r]}, {B2[0][0][r]}')
for r in range(4): a(f'v_xor_b32 {B2[1][1][r]}, {dl}, {B2[0][1][r]}')
a(f'''
s_cmp_lg_u32 {sWave}, 0
s_cselect_b32 {sK[0]}, 0x3580, 0
s_cselect_b32 {sK[1]}, 0xb5800000, 0
s_mov_b32 {sK[2]}, 0x3580
s_cmov_b32 {sK[2]}, 0x35800000
v_cmp_eq_u32 vcc, 0, {vg}
v_xor_b32 {tc[0]}, 0x3580, {dl}
v_xor_b32 {tc[1]}, {sK[0]}, {dl}
v_xor_b32 {tc[2]}, {sK[1]}, {dl}
v_xor_b32 {tc[3]}, {sK[2]}, {dl}
v_cndmask_b32 {AN[0][0]}, 0, {tc[0]}, vcc
v_cndmask_b32 {AN[0][1]}, 0, {tc[1]}, vcc
v_cndmask_b32 {AN[1][0]}, 0, {tc[2]}, vcc
v_cndmask_b32 {AN[1][1]}, 0, {tc[3]}, vcc
v_mov_b32 {AN[0][2]}, 0
v_mov_b32 {AN[0][3]}, 0
v_mov_b32 {AN[1][2]}, 0
v_mov_b32 {AN[1][3]}, 0
v_mov_b32 {NB[2]}, 0
v_mov_b32 {NB[3]}, 0
''')
g1 = V.alloc(1); g3 = V.alloc(1); w3 = V.alloc(1); aA = V.alloc(1); aF = V.alloc(3); aN = V.alloc(1); aYw = V.alloc(1); aYr = V.alloc(1)
a(f'''
v_lshrrev_b32 {vt}, 2, v0
v_mul_u32_u24 {g1}, {T2_S}, {vt}
v_and_b32 {vt2}, 3, v0
v_lshl_add_u32 {g1}, {vt2}, 4, {g1}
v_add_u32 {w3}, 512, v0
v_min_u32 {w3}, 703, {w3}
v_lshrrev_b32 {vt}, 2, {w3}
v_mul_u32_u24 {g3}, {T2_S}, {vt}
v_and_b32 {vt2}, 3, {w3}
v_lshl_add_u32 {g3}, {vt2}, 4, {g3}
v_lshlrev_b32 {w3}, 4, {w3}
s_lshl_b32 {sK[0]}, {sIdx}, 6
s_add_u32 {sK[0]}, {sK[0]}, {T2_B}
s_add_u32 {sK[1]}, {sK[0]}, {64*T2_S}
v_mul_u32_u24 {aA}, {AT_S}, v0
s_lshl_b32 {sK[2]}, {sIdx}, 4
s_add_u32 {sK[2]}, {sK[2]}, {AT_B}
s_add_u32 {sK[3]}, {sK[2]}, 4096
s_add_u32 {sE}, {sK[2]}, 8192
v_and_b32 {vt}, 1, {vg}
v_lshl_add_u32 {vt}, {vt}, 7, {l15}
v_lshrrev_b32 {vt2}, 1, {vg}
v_mul_u32_u24 {vt2}, 1408, {vt2}
s_mul_i32 {sT}, {sWave}, 2816
v_add_u32 {vt2}, {sT}, {vt2}
''')
for j in range(3):
    a(f'v_add_u32 {fb}, {16*j}, {vt}')
    a(f'v_mul_u32_u24 {aF[j]}, 171, {fb}')
    a(f'v_lshrrev_b32 {aF[j]}, 9, {aF[j]}')
    a(f'v_add_u32 {fb}, {fb}, {aF[j]}')
    a(f'v_lshl_add_u32 {aF[j]}, {fb}, 2, {vt2}')
a(f'''
v_mov_b32 {aN}, {sT}
v_bfe_u32 {vt}, {l15}, 1, 2
v_xor_b32 {vt}, {vt}, {vg}
v_lshlrev_b32 {vt}, 4, {vt}
v_lshl_add_u32 {aYw}, {l15}, 6, {vt}
s_lshl_b32 {sT}, {sWave}, 12
v_add_u32 {aYw}, {sT}, {aYw}
v_lshrrev_b32 {vt}, 3, v0
v_xor_b32 {vt}, {vt}, v0
v_and_b32 {vt}, 6, {vt}
v_and_b32 {vt2}, 1, v0
v_or_b32 {vt}, {vt}, {vt2}
v_lshlrev_b32 {vt}, 3, {vt}
v_lshrrev_b32 {vt2}, 3, v0
v_lshl_add_u32 {aYr}, {vt2}, 6, {vt}
''')
L3 = TU
loads = [f'buffer_load_dwordx4 {L3[0:4]}, {g1}, {sWS}, {sK[0]} offen sc1',
         f'buffer_load_dwordx4 {L3[4:8]}, {g1}, {sWS}, {sK[1]} offen sc1',
         f'buffer_load_dwordx4 {L3[8:12]}, {g3}, {sWS}, {sK[0]} offen sc1']
a('s_waitcnt vmcnt(0)')
a(f'''
s_cmp_lt_u32 {sGrp}, 22
s_cbranch_scc1 L_t2go
s_mov_b64 exec, 1
s_mov_b32 {sSpin}, 0
L_canary:
buffer_load_dwordx4 {L3[0:4]}, {g1}, {sWS}, {sK[1]} offen sc1
s_add_u32 {sSpin}, {sSpin}, 1
s_waitcnt vmcnt(0)
v_cmp_ne_u32 vcc, {sTag}, {L3[3]}
s_cbranch_vccz L_canok
s_sleep 4
s_cmp_lt_u32 {sSpin}, {SPIN}
s_cbranch_scc1 L_canary
L_canok:
s_mov_b64 exec, -1
L_t2go:
''')
stamp('f')
emit(loads)
check_retry(loads, [L3[3], L3[7], L3[11]], vt, vt2)
stamp('f')
AU = XU
aloads = [f'buffer_load_dwordx4 {AU[4*u:4*u+4]}, {aA}, {sWS}, {(sK[2], sK[3], sE)[u]} offen sc1' for u in range(3)]
a(f'ds_write_b128 {aRd}, {L3[0:4]} offset:{T2IN}')
a(f'ds_write_b128 {aRd}, {L3[4:8]} offset:{T2IN + 4096}')
a(f'ds_write_b128 {w3}, {L3[8:12]} offset:{T2IN}')
emit(aloads)
a.barrier()
AF = [V.alloc(4, 4) for _ in range(2)]
for blk in range(2):
    for r in range(4):
        off = 16 * blk + 32 * r
        a(f'ds_read_b32 {AF[blk][r]}, {aF[(off % 48) // 16]} offset:{T2IN + 256 * (off // 48)}')
a(f'ds_read_b32 {NB[0]}, {aN} offset:{T2IN + 341*4}')
a(f'ds_read_b32 {NB[1]}, {aN} offset:{T2IN + 341*4 + 1408}')
Dre = [[V.alloc(4, 4) for b in range(2)] for q in range(2)]; Dim = [[V.alloc(4, 4) for b in range(2)] for q in range(2)]
VV = [[V.alloc(4, 4) for b in range(2)] for q in range(2)]
Y = [[V.alloc(4, 4) for db in range(2)] for q in range(2)]
for blk in range(2):
    for q in range(2):
        a(mf16(Dre[q][blk], AF[blk], B1[q][0], 0)); a(mf16(Dim[q][blk], AF[blk], B1[q][1], 0))
for q in range(2):
    for db in range(2): a(mf16(Y[q][db], AN[q], NB, 0))
for q in range(2):
    for blk in range(2):
        emit(twiddle(Dre[q][blk], Dim[q][blk], T3c[blk], T3s[blk], tre, tim, VV[q][blk], +1))
        for db in range(2): a(mf16(Y[q][db], VV[q][blk], B2[blk][db], Y[q][db]))
    if q == 1:
        for db in range(2): a(f'ds_write_b128 {aYw}, {Y[0][db]} offset:{YROW + 1024*db}')
for db in range(2): a(f'ds_write_b128 {aYw}, {Y[1][db]} offset:{YROW + 2048 + 1024*db}')
check_retry(aloads, [AU[3], AU[7], AU[11]], vt, vt2)
V.release(*Dre[0], *Dre[1], *Dim[0], *Dim[1], *VV[0], *VV[1], *AF)
GA = [V.alloc(2, 2) for _ in range(8)]
for s in range(8):
    a(f'v_lshlrev_b32 {GA[s][0]}, 16, {X[s]}'); a(f'v_and_b32 {GA[s][1]}, 0xffff0000, {X[s]}')
a.barrier()
Rr = [V.alloc(2, 2) for _ in range(8)]
for q in (0, 1, 4, 5, 2, 6, 3, 7): a(f'ds_read_b64 {Rr[q]}, {aYr} offset:{YROW + 2048*q}')
for s in range(8): a(f'v_pk_mul_f32 {GA[s]}, {GA[s]}, {sG[2*s:2*s+2]} op_sel_hi:[1,0]')
R0, R4, A1, Bq1, A2, Bq2, A3, Bq3 = Rr
E = [V.alloc(2, 2) for _ in range(4)]; e0 = V.alloc(2, 2); e1 = V.alloc(2, 2)
Oo = [V.alloc(2, 2) for _ in range(4)]
a(f'''
v_pk_add_f32 {e0}, {R0}, {R4}
v_pk_add_f32 {e1}, {R0}, {R4} {NEG1}
v_pk_add_f32 {E[0]}, {e0}, {A2}
v_pk_add_f32 {E[2]}, {e0}, {A2} {NEG1}
v_pk_add_f32 {E[1]}, {e1}, {Bq2}
v_pk_add_f32 {E[3]}, {e1}, {Bq2} {NEG1}
v_pk_add_f32 {Oo[0]}, {A1}, {A3}
v_pk_add_f32 {e0}, {A1}, {A3} {NEG1}
v_pk_add_f32 {Oo[2]}, {Bq1}, {Bq3} {NEG1}
v_pk_add_f32 {e1}, {Bq1}, {Bq3}
''')
yy = Rr
a(f'''
v_pk_add_f32 {yy[0]}, {E[0]}, {Oo[0]}
v_pk_add_f32 {yy[4]}, {E[0]}, {Oo[0]} {NEG1}
v_pk_add_f32 {Oo[1]}, {e1}, {e0}
v_pk_add_f32 {Oo[3]}, {e1}, {e0} {NEG1}
v_pk_add_f32 {yy[2]}, {E[2]}, {Oo[2]}
v_pk_add_f32 {yy[6]}, {E[2]}, {Oo[2]} {NEG1}
v_pk_fma_f32 {yy[1]}, {Oo[1]}, {sH}, {E[1]} op_sel_hi:[1,0,1]
v_pk_fma_f32 {yy[5]}, {Oo[1]}, {sH}, {E[1]} op_sel_hi:[1,0,1] neg_lo:[1,0,0] neg_hi:[1,0,0]
v_pk_fma_f32 {yy[3]}, {Oo[3]}, {sH}, {E[3]} op_sel_hi:[1,0,1]
v_pk_fma_f32 {yy[7]}, {Oo[3]}, {sH}, {E[3]} op_sel_hi:[1,0,1] neg_lo:[1,0,0] neg_hi:[1,0,0]
''')
of = V.alloc(8)
for s in (0, 4, 2, 6, 1, 5, 3, 7):
    a(f'v_pk_fma_f32 {yy[s]}, {yy[s]}, {sG[2*s:2*s+2]}, {GA[s]} op_sel:[0,1,0]')
for s in (0, 4, 2, 6, 1, 5, 3, 7):
    a(f'v_cvt_pk_bf16_f32 {of[s]}, {yy[s][0]}, {yy[s][1]}')
    a(f'buffer_store_dword {of[s]}, {vXo}, {sOut}, {sOff[s] if s else 0} offen')
stamp('f')
a(f'''
s_or_b32 {sT}, s2, {sWave}
s_cmp_lg_u32 {sT}, 0
s_cbranch_scc1 L_fdone
v_mov_b32 {of[0]}, {sTag}
v_mov_b32 {vt}, 0
s_mov_b64 exec, 1
buffer_store_dword {of[0]}, {vt}, {sWS}, 0 offen
s_mov_b64 exec, -1
L_fdone:
''')
if STAMP:
    a('s_waitcnt vmcnt(0)'); stamp('f')
stamp_flush()
a('s_endpgm')
vmax = V.hi

a.forget()
nstamp[0] = 0
V = Regs('v', 1, 250)
S2 = Regs('s', 3, 100)
for r in (sWS, sTag, sIdx, sW8, sWave, sT, sT2, sSpin, sPc, sStamp):
    for i in range(r.n): S2.free.discard(r.b + i)
sP = S2.alloc(16, 4); sE = S2.alloc(1); sD = S2.alloc(2); sK = S2.alloc(4); sCh = S2.alloc(1); sHf = S2.alloc(1)
EP_C, EP_R = 28832, 544
UREV, UREV_C = 0, 4224
KC, KC_C = 8448, 3104
EP = 14720
KEO, KEO_C, KEO_O = EP, 9600, 4800
YP, YP_S = EP + 19200, 144
a('L_conv:')
a(f's_load_dwordx16 {sP}, s[0:1], 8')
prm = V.alloc(8); vo = V.alloc(1); vo2 = V.alloc(1); vt = V.alloc(1); vt2 = V.alloc(1)
vlane = V.alloc(1); l15 = V.alloc(1); vg = V.alloc(1)
a(f'''
s_lshl_b32 {sT}, {sIdx}, 9
v_lshl_add_u32 {vo}, v0, 1, {sT}
s_lshr_b32 {sCh}, {sWave}, 1
s_and_b32 {sHf}, {sWave}, 1
s_lshl_b32 {sT}, {sIdx}, 1
s_add_u32 {sT}, {sT}, {sCh}
s_lshl_b32 {sT}, {sT}, 1
v_mov_b32 {vo2}, {sT}
v_and_b32 {vlane}, 63, v0
v_and_b32 {l15}, 15, v0
v_bfe_u32 {vg}, v0, 4, 2
s_waitcnt lgkmcnt(0)
global_load_ushort {prm[6]}, {vo2}, {sP[12:14]}
''')
for i in range(6): a(f'global_load_ushort {prm[i]}, {vo}, {sP[2*i:2*i+2]}')
a(f'''
s_load_dword {sE}, {sWS[0:2]}, 0
s_lshl_b32 {sT}, {sIdx}, 2
s_load_dword {sD[0]}, {sP[14:16]}, {sT}
''')
dummy = V.alloc(4)
if opt('pf', 1):
    a(f'v_lshlrev_b32 {vt}, 7, v0')
    a(f'v_min_u32 {vt}, L_codeend-L_pcref-4, {vt}')
    a(f'global_load_dword {dummy[0]}, {vt}, {sPc}')
if opt('tlb', 1):
    holes = []
    for pg in range(6):
        lo, hi = pg << 21, (pg + 1) << 21
        for (b, s, n, used) in ((XT_B, XT_S, 256, 12288), (T1_B, T1_S, 256, 11264), (T2_B, T2_S, 176, 16384), (AT_B, AT_S, 256, 12288)):
            c = [b + i * s + used for i in range(n) if lo <= b + i * s + used < hi]
            if c: holes.append(c[0]); break
    assert len(holes) == 6
    a(f'v_mov_b32 {vt2}, {holes[0]}')
    for i in range(1, 6): a(f'v_writelane_b32 {vt2}, {sT}, {i}' if False else f's_mov_b32 {sT}, {holes[i]}\nv_writelane_b32 {vt2}, {sT}, {i}')
    a(f'buffer_load_dword {dummy[1]}, {vt2}, {sWS}, 0 offen')
stamp('c')
aEP = V.alloc(1); aE = V.alloc(1); aPm = V.alloc(1); aK0 = V.alloc(1); aK1 = V.alloc(1); aK2 = V.alloc(1)
aX = V.alloc(9); aKw = V.alloc(1); aUw = V.alloc(1); aXg = V.alloc(1); aSt = V.alloc(1)
aB = V.alloc(8); aB0 = V.alloc(4); aAf = V.alloc(1); aYw = V.alloc(1); aYr = V.alloc(1)
zero = V.alloc(4, 4)
a(f'''
s_mul_i32 {sT}, {sCh}, {EP_C}
s_add_u32 {sT}, {sT}, {EP}
v_and_b32 {vt}, 127, v0
v_lshl_add_u32 {aEP}, {vt}, 2, {sT}
v_mul_u32_u24 {vt}, {EP_R}, {l15}
v_lshl_add_u32 {vt}, {vg}, 4, {vt}
v_add_u32 {aPm}, {sT}, {vt}
s_mul_i32 {sT2}, {sHf}, {16*EP_R}
v_add_u32 {aE}, {sT2}, {aPm}
s_lshl_b32 {sT}, {sHf}, 4
v_add_u32 {vo}, {sT}, {l15}
s_mul_i32 {sT}, {sCh}, {KC_C}
s_add_u32 {sT}, {sT}, {KC + 16}
v_lshlrev_b32 {vt}, 3, {vo}
v_lshl_add_u32 {vt}, {vg}, 2, {vt}
v_lshlrev_b32 {vt2}, 2, {vo}
v_add_u32 {vt2}, 256, {vt2}
v_cmp_eq_u32 vcc, 2, {vg}
v_lshlrev_b32 {aK1}, 1, {vo}
v_add_u32 {aK1}, 384, {aK1}
v_cndmask_b32 {vt}, {vt}, {vt2}, vcc
v_cmp_eq_u32 vcc, 3, {vg}
v_mov_b32 {vt2}, 2
v_lshl_add_u32 {aK2}, {vg}, 7, {vo}
v_cndmask_b32 {vt}, {vt}, {aK1}, vcc
v_cndmask_b32 {vt2}, {vt2}, 64, vcc
v_lshl_add_u32 {aK0}, {vt}, 2, {sT}
v_lshl_add_u32 {aK1}, {vt2}, 2, {aK0}
v_add_u32 {aK2}, 512, {aK2}
v_lshl_add_u32 {aK2}, {aK2}, 2, {sT}
v_lshlrev_b32 {vt}, 3, v0
v_lshlrev_b32 {vt2}, 2, v0
v_add_u32 {vt2}, 128, {vt2}
v_min_u32 {vt}, {vt}, {vt2}
v_lshlrev_b32 {vt2}, 1, v0
v_add_u32 {vt2}, 256, {vt2}
v_min_u32 {vt}, {vt}, {vt2}
v_add_u32 {vt2}, 384, v0
v_min_u32 {vt}, {vt}, {vt2}
v_lshlrev_b32 {vt}, 2, {vt}
v_add_u32 {vt}, {KC + 16}, {vt}
v_and_b32 {vt2}, 1, v0
v_lshlrev_b32 {vt2}, 16, {vt2}
v_or_b32 {vt2}, 0x11100000, {vt2}
v_mov_b32 {vo}, 0x22111000
v_cmp_gt_u32 vcc, 128, v0
v_mov_b32 {vo2}, 0x43222100
s_nop 0
v_cndmask_b32 {vt2}, {vt2}, {vo}, vcc
v_cmp_gt_u32 vcc, 64, v0
v_mov_b32 {vo}, 0x76543210
s_nop 0
v_cndmask_b32 {vt2}, {vt2}, {vo2}, vcc
v_cmp_gt_u32 vcc, 32, v0
s_nop 1
v_cndmask_b32 {vt2}, {vt2}, {vo}, vcc
v_cmp_gt_u32 vcc, 33, v0
v_add_u32 {vo}, -4, {vt}
''')
for e in range(8):
    a(f'v_bfe_u32 {aX[e+1]}, {vt2}, {4*e}, 4'); a(f'v_lshl_add_u32 {aX[e+1]}, {aX[e+1]}, 2, {vt}')
a(f'''
v_cndmask_b32 {aX[0]}, {vt}, {vo}, vcc
v_lshrrev_b32 {vt}, 3, v0
v_mul_u32_u24 {aKw}, 144, {vt}
v_and_b32 {vt2}, 7, v0
v_lshl_add_u32 {aKw}, {vt2}, 4, {aKw}
v_lshlrev_b32 {aUw}, 4, {vt}
v_sub_u32 {vt2}, 7, {vt2}
v_lshl_add_u32 {aUw}, {vt2}, 1, {aUw}
v_mul_u32_u24 {aXg}, {XT_S}, v0
v_lshlrev_b32 {aSt}, 4, v0
s_lshl_b32 {sK[0]}, {sIdx}, 4
s_add_u32 {sK[0]}, {sK[0]}, {XT_B}
s_add_u32 {sK[1]}, {sK[0]}, 4096
s_add_u32 {sK[2]}, {sK[0]}, 8192
v_and_b32 {vt}, 3, v0
v_bfe_u32 {vt2}, v0, 4, 1
v_lshl_add_u32 {vt}, {vt2}, 2, {vt}
v_bfe_u32 {vo}, v0, 2, 2
v_bfe_u32 {vo2}, v0, 5, 1
v_lshrrev_b32 {aAf}, 1, {vt}
v_lshl_add_u32 {aAf}, {vo2}, 2, {aAf}
v_add_u32 {aAf}, -3, {aAf}
v_and_b32 {vt2}, 1, {vt}
v_sub_u32 {vt2}, 1, {vt2}
v_mul_u32_u24 {vt2}, {KEO_O}, {vt2}
v_mul_u32_u24 {aYw}, 144, {vo}
s_mul_i32 {sT}, {sCh}, {KEO_C}
s_add_u32 {sT}, {sT}, {KEO + 144}
v_add3_u32 {vt2}, {vt2}, {aYw}, {sT}
v_lshl_add_u32 {aB[0]}, {aAf}, 2, {vt2}
''')
for b in range(1, 8): a(f'v_add_u32 {aB[b]}, {576*b}, {aB[0]}')
for j in range(4):
    a(f'v_add_u32 {aYr}, {j}, {aAf}')
    a(f'v_ashrrev_i32 {aYw}, 31, {aYr}')
    a(f'v_lshl_add_u32 {aYr}, {aYw}, 2, {aYr}')
    a(f'v_lshl_add_u32 {aB0[j]}, {aYr}, 2, {vt2}')
a(f'''
v_and_b32 {aAf}, 31, v0
v_sub_u32 {aAf}, {aAf}, {vo2}
s_mul_i32 {sT}, {sCh}, {UREV_C}
s_add_u32 {sT}, {sT}, {UREV + 32}
v_lshl_add_u32 {aAf}, {aAf}, 4, {sT}
v_lshl_add_u32 {vt}, {vo}, 6, {vt}
v_lshl_add_u32 {vt}, {vo2}, 5, {vt}
v_mul_u32_u24 {aYw}, {YP_S}, {vt}
s_lshl_b32 {sT}, {sWave}, 5
v_add_u32 {aYw}, {sT}, {aYw}
v_mul_u32_u24 {aYr}, {YP_S}, v0
v_mov_b32 {zero[0]}, 0
v_mov_b32 {zero[1]}, 0
v_mov_b32 {zero[2]}, 0
v_mov_b32 {zero[3]}, 0
v_and_b32 {vt}, 7, v0
v_lshlrev_b32 {vt}, 4, {vt}
ds_write_b128 {vt}, {zero} offset:{UREV}
ds_write_b128 {vt}, {zero} offset:{UREV + UREV_C}
ds_write_b128 {zero[0]}, {zero} offset:{KC}
ds_write_b128 {zero[0]}, {zero} offset:{KC + KC_C}
''')
stamp('c')
L2E = 1 / math.log(2); L2Eh = struct.unpack('<f', struct.pack('<f', L2E))[0]; L2El = L2E - L2Eh
dt = V.alloc(1); lm = V.alloc(1); rvv = V.alloc(1); tA = V.alloc(4); tB = V.alloc(4)
z = V.alloc(2, 2); w = V.alloc(2, 2); q = V.alloc(2, 2); cB = V.alloc(2, 2); cC = V.alloc(2, 2)
a(f'''
v_lshlrev_b32 {dt}, 16, {prm[6]}
v_mul_f32 {tA[0]}, {f2u(L2Eh)}, {dt}
s_mov_b32 {sT}, {f2u(L2Eh)}
v_fma_f32 {tA[1]}, {dt}, {sT}, -{tA[0]}
v_exp_f32 {tA[0]}, {tA[0]}
v_fmamk_f32 {tA[1]}, {dt}, {f2u(L2El)}, {tA[1]}
v_mul_f32 {tA[1]}, {f2u(math.log(2))}, {tA[1]}
v_fma_f32 {dt}, {tA[0]}, {tA[1]}, {tA[0]}
v_cvt_pk_bf16_f32 {dt}, {dt}, {dt}
v_and_b32 {dt}, 0xffff0000, {dt}
v_lshlrev_b32 {lm}, 16, {prm[0]}
v_lshlrev_b32 {rvv}, 16, {prm[1]}
v_lshlrev_b32 {cB[0]}, 16, {prm[2]}
v_lshlrev_b32 {cB[1]}, 16, {prm[3]}
v_lshlrev_b32 {cC[0]}, 16, {prm[4]}
v_lshlrev_b32 {cC[1]}, 16, {prm[5]}
v_mul_f32 {lm}, {dt}, {lm}
v_mul_f32 {rvv}, {dt}, {rvv}
v_mul_f32 {cB[0]}, {dt}, {cB[0]}
v_mul_f32 {cB[1]}, {dt}, {cB[1]}
v_mul_f32 {lm}, {f2u(L2Eh)}, {lm}
v_mul_f32 {rvv}, 0.15915494, {rvv}
''')
for i, (d, m) in enumerate(((w, 8.0), (z, 1.0), (q, 256.0))):
    a(f'v_mul_f32 {tA[i]}, {f2u(m)}, {lm}'); a(f'v_mul_f32 {tB[i]}, {f2u(m)}, {rvv}')
for i in range(3):
    a(f'v_exp_f32 {tA[i]}, {tA[i]}'); a(f'v_fract_f32 {tB[i]}, {tB[i]}')
for i, d in enumerate((w, z, q)):
    a(f'v_cos_f32 {d[0]}, {tB[i]}'); a(f'v_sin_f32 {d[1]}, {tB[i]}')
for i, d in enumerate((w, z, q)):
    a(f'v_mul_f32 {d[0]}, {tA[i]}, {d[0]}'); a(f'v_mul_f32 {d[1]}, {tA[i]}, {d[1]}')
ob = V.alloc(14); obi = [0]; obc = [6]
def put(row, val, neg):
    o = ob[2*obc[0] + obi[0] % 2]; obi[0] += 1
    return [f'v_cvt_pk_bf16_f32 {o}, {val[0]}, {"-" if neg else ""}{val[1]}', f'ds_write_b32 {aEP}, {o} offset:{row*EP_R}']
Ec = [[V.alloc(2, 2) for _ in range(2)] for _ in range(4)]
E4 = V.alloc(2, 2)
Pz = [V.alloc(2, 2) for _ in range(8)]; Pq = [V.alloc(2, 2) for _ in range(2)]; Px = [V.alloc(2, 2) for _ in range(3)]
chains = []
head = []
head += [f'v_mov_b32 {ob[0]}, 0x3f80', f'ds_write_b32 {aEP}, {ob[0]} offset:0']
head += cmul(Ec[2][0], w, w) + cmul(Pz[0], cC, cB)
head += put(1, w, 0)
head += cmul(Ec[3][0], Ec[2][0], w) + cmul(E4, Ec[2][0], Ec[2][0])
head += put(2, Ec[2][0], 0) + put(32, Pz[0], 1)
emit(head)
for ch in range(4):
    steps = []; obc[0] = ch
    first = {1: w, 2: Ec[2][0], 3: Ec[3][0], 0: E4}[ch]
    cur = first; idx = ch if ch else 4
    if ch == 3: steps.append(put(3, cur, 0))
    if ch == 0: steps.append(put(4, cur, 0))
    pp = 1
    while idx + 4 < 32:
        nxt = Ec[ch][pp]; pp ^= 1
        steps.append(cmul(nxt, cur, E4)); idx += 4
        steps.append(put(idx, nxt, 0)); cur = nxt
    chains.append(steps)
st = []; obc[0] = 4
for i in range(1, 8):
    st.append(cmul(Pz[i], Pz[i-1], z)); st.append(put(32 + i, Pz[i], 1))
for i, (src, row) in enumerate(((2, 9), (4, 10), (6, 11))):
    st.append(cmul(Px[i], Pz[src], q)); st.append(put(32 + row, Px[i], 1))
st.append(cmul(Px[0], Px[1], q)); st.append(put(32 + 13, Px[0], 1))
st.append(cmul(Px[2], Px[0], q)); st.append(put(32 + 15, Px[2], 1))
chains.append(st)
st = []; cur = Pz[0]; obc[0] = 5
for i, row in enumerate((8, 12, 14, 16, 17, 18, 19, 20)):
    nxt = Pq[i & 1]
    st.append(cmul(nxt, cur, q)); st.append(put(32 + row, nxt, 1)); cur = nxt
chains.append(st)
pos = [[0, 0] for _ in chains]
live = True
while live:
    live = False
    for ci, ch in enumerate(chains):
        si, ii = pos[ci]
        reps = 2 if ci == 4 else 1
        for _ in range(reps):
            si, ii = pos[ci]
            if si >= len(ch): continue
            live = True
            a(ch[si][ii]); ii += 1
            if ii == len(ch[si]): si += 1; ii = 0
            pos[ci] = [si, ii]
a(f'''
s_mul_i32 {sTag}, {sE}, 0x9E3779B1
s_add_u32 {sTag}, {sTag}, 0x7F4A7C15
s_lshr_b32 {sD[1]}, {sD[0]}, 16
s_lshl_b32 {sD[1]}, {sD[1]}, 16
s_and_b32 {sD[0]}, {sD[0]}, 0xffff
''')
a.barrier()
stamp('c')
V.release(*[x for p in Ec for x in p], E4, *Pz, *Pq, *Px, ob, z, w, q, cB, cC, tA, tB, dt, lm, rvv, prm)
XU = V.alloc(12, 4); X = [XU[s + s // 3] for s in range(8)]
xloads = [f'buffer_load_dwordx4 {XU[4*u:4*u+4]}, {aXg}, {sWS}, {sK[u]} offen sc1' for u in range(3)]
FB = [V.alloc(4, 4) for _ in range(8)]; FA = [[V.alloc(4, 4) for _ in range(8)] for _ in range(2)]
K0 = V.alloc(4, 4); K1 = V.alloc(4, 4)
for k in range(8):
    a(f'ds_read_b128 {FB[k]}, {aE} offset:{64*k}')
    a(f'ds_read_b128 {FA[0][k]}, {aPm} offset:{32*EP_R + 64*k}')
    a(f'ds_read_b128 {FA[1][k]}, {aPm} offset:{48*EP_R + 64*k}')
for k in range(8):
    a(mf16(K0, FA[0][k], FB[k], K0 if k else 0)); a(mf16(K1, FA[1][k], FB[k], K1 if k else 0))
emit(xloads)
a(f'ds_write_b64 {aK0}, {K0[0:2]}'); a(f'ds_write_b64 {aK1}, {K0[2:4]}')
a('s_mov_b32 exec_hi, 0')
for r in range(4): a(f'ds_write_b32 {aK2}, {K1[r]} offset:{128*r}')
a('s_mov_b64 exec, -1')
a.barrier()
V.release(*FB, *FA[0], *FA[1], K0, K1)
kv = [V.alloc(9) for _ in range(2)]; kE = [V.alloc(4, 4) for _ in range(2)]; kO = [V.alloc(4, 4) for _ in range(2)]
for c in range(2):
    for e in range(9): a(f'ds_read_b32 {kv[c][e]}, {aX[e]} offset:{KC_C*c}')
for c in range(2):
    for o in range(2): a(f'ds_write_b128 {zero[0]}, {zero} offset:{KEO + KEO_C*c + KEO_O*o + 112}')
for c in range(2):
    for i in range(4):
        a(f'v_cvt_pk_bf16_f32 {kE[c][i]}, {kv[c][2*i+1]}, {kv[c][2*i+2]}')
        a(f'v_cvt_pk_bf16_f32 {kO[c][i]}, {kv[c][2*i]}, {kv[c][2*i+1]}')
    a(f'ds_write_b128 {aKw}, {kE[c]} offset:{KEO + KEO_C*c + 144}')
    a(f'ds_write_b128 {aKw}, {kO[c]} offset:{KEO + KEO_C*c + KEO_O + 144}')
stamp('c')
check_retry(xloads, [XU[3], XU[7], XU[11]], vt, vt2)
stamp('c')
for s in range(8):
    a(f'ds_write_b16 {aUw}, {X[s]} offset:{UREV + 128 + 512*s}')
    a(f'ds_write_b16_d16_hi {aUw}, {X[s]} offset:{UREV + UREV_C + 128 + 512*s}')
a.barrier()
V.release(*kv, *kE, *kO, aEP, aE, aPm, aK0, aK1, aK2, aX, aKw, aUw, zero, vo, vo2, l15, vg, vlane)
stamp('c')

ACC = [V.alloc(16, 4) for _ in range(4)]
FAb = [V.alloc(32, 4) for _ in range(2)]; FBb = [V.alloc(32, 4) for _ in range(2)]
FA = [[FAb[p][4*i:4*i+4] for i in range(8)] for p in range(2)]; FB = [[FBb[p][4*i:4*i+4] for i in range(8)] for p in range(2)]
EM = [FAb[0][8*i:8*i+6] for i in range(4)]
def reads(kp, nmax):
    o = []
    for b in range(nmax + 1):
        o.append(f'ds_read_b128 {FA[kp&1][b]}, {aAf} offset:{512*b + (6 - 2*kp)*16 - 0}')
        if kp == 0:
            for j in range(4): o.append(f'ds_read_b32 {FB[0][b][j]}, {aB0[j]} offset:{576*b}')
        else:
            o.append(f'ds_read2_b32 {FB[kp&1][b][0:2]}, {aB[b]} offset0:{8*kp} offset1:{8*kp+1}')
            o.append(f'ds_read2_b32 {FB[kp&1][b][2:4]}, {aB[b]} offset0:{8*kp+2} offset1:{8*kp+3}')
    return o
DP = 'row_mask:0xf bank_mask:0xf bound_ctrl:1'
def lower(acc, slot, onto=False):
    o = []
    for i in range(4):
        d = EM[i][slot]
        if onto: o.append(f'v_add_f32 {d}, {acc[i]}, {d}'); o.append(f'v_add_f32_dpp {d}, {acc[4+i]}, {d} row_shr:4 {DP}')
        else: o.append(f'v_add_f32_dpp {d}, {acc[4+i]}, {acc[i]} row_shr:4 {DP}')
    for i in range(4): o.append(f'v_add_f32_dpp {EM[i][slot]}, {acc[8+i]}, {EM[i][slot]} row_shr:8 {DP}')
    for i in range(4): o.append(f'v_add_f32_dpp {EM[i][slot]}, {acc[12+i]}, {EM[i][slot]} row_shr:12 {DP}')
    return o
def upper(acc, slot):
    o = []
    for i in range(4): o.append(f'v_mov_b32_dpp {EM[i][slot]}, {acc[12+i]} row_shl:4 {DP}')
    for i in range(4): o.append(f'v_add_f32_dpp {EM[i][slot]}, {acc[8+i]}, {EM[i][slot]} row_shl:8 {DP}')
    for i in range(4): o.append(f'v_add_f32_dpp {EM[i][slot]}, {acc[4+i]}, {EM[i][slot]} row_shl:12 {DP}')
    return o
def conv_variant(taus, plan):
    nmax = max(taus)
    emit(reads(0, nmax))
    for kp in range(4):
        if kp == 0:
            order = sorted([(ti, b) for ti, t in enumerate(taus) for b in range(t + 1)], key=lambda x: max(x[1], taus[x[0]] - x[1]))
        else:
            order = [(ti, b) for ti, t in enumerate(taus) for b in range(t + 1)]
        fill = reads(kp + 1, nmax) if kp < 3 else []
        seen = set(); pend = []
        for n, (ti, b) in enumerate(order):
            first = kp == 0 and ti not in seen; seen.add(ti)
            a(mf32(ACC[ti], FA[kp&1][taus[ti] - b], FB[kp&1][b], 0 if first else ACC[ti]))
            if kp < 3:
                k = -(-len(fill) // (len(order) - n)) if n >= 1 else 0
                for _ in range(k): a(fill.pop(0))
            else:
                if b == 1 and ti > 0: pend += plan[ti - 1]
                if b == 0 and ti > 0 and taus[ti] == 0: pend += plan[ti - 1]
                for _ in range(min(6, len(pend))): a(pend.pop(0))
        emit(pend)
    emit(plan[len(taus) - 1])
    for i in range(4):
        a(f'ds_write_b128 {aYw}, {EM[i][0:4]} offset:{YP + 8*YP_S*i}')
        a(f'ds_write_b64 {aYw}, {EM[i][4:6]} offset:{YP + 8*YP_S*i + 16}')
a(f's_cmp_eq_u32 {sHf}, 1'); a('s_cbranch_scc1 L_cvb')
conv_variant((0, 3, 4, 7), [lower(ACC[0], 0) + upper(ACC[0], 1), lower(ACC[1], 2) + upper(ACC[1], 3), lower(ACC[2], 3, True) + upper(ACC[2], 4), lower(ACC[3], 5)])
a('s_waitcnt lgkmcnt(0)'); a('s_branch L_cvj'); a('L_cvb:')
conv_variant((1, 2, 5, 6), [lower(ACC[0], 0) + upper(ACC[0], 1), lower(ACC[1], 1, True) + upper(ACC[1], 2), lower(ACC[2], 3) + upper(ACC[2], 4), lower(ACC[3], 4, True) + upper(ACC[3], 5)])
a('s_waitcnt lgkmcnt(0)'); a('L_cvj:')
a('s_barrier')
stamp('c')
V.release(*ACC, *FAb, *FBb)
YV = [V.alloc(6, 2) for _ in range(4)]
for i in range(4):
    a(f'ds_read_b128 {YV[i][0:4]}, {aYr} offset:{YP + 32*i}'); a(f'ds_read_b64 {YV[i][4:6]}, {aYr} offset:{YP + 32*i + 16}')
a(f'''
s_mul_i32 {sT}, {sIdx}, {AT_S}
s_add_u32 {sK[0]}, {sT}, {AT_B}
s_add_u32 {sK[1]}, {sK[0]}, 4096
s_add_u32 {sK[2]}, {sK[0]}, 8192
''')
OU = V.alloc(12, 4)
for u in range(3): a(f'v_mov_b32 {OU[4*u+3]}, {sTag}')
a(f'v_mov_b32 {OU[10]}, 0')
yv = []
for c in range(2):
    A, B = YV[2*c], YV[2*c+1]
    a(f'v_add_f32 {B[0]}, {B[0]}, {A[1]}'); a(f'v_add_f32 {A[2]}, {A[2]}, {B[2]}')
    a(f'v_add_f32 {B[3]}, {B[3]}, {A[4]}'); a(f'v_add_f32 {A[5]}, {A[5]}, {B[5]}')
    yv.append([A[0], B[0], B[1], A[2], A[3], B[3], B[4], A[5]])
for c in range(2):
    for s in range(8): a(f'v_dot2_f32_bf16 {yv[c][s]}, {X[s]}, {sD[c]}, {yv[c][s]}')
for s in range(8): a(f'v_cvt_pk_bf16_f32 {OU[s + s//3]}, {yv[0][s]}, {yv[1][s]}')
for u in range(3): a(f'buffer_store_dwordx4 {OU[4*u:4*u+4]}, {aSt}, {sWS}, {sK[u]} offen sc1')
if STAMP:
    stamp('c'); a('s_waitcnt vmcnt(0)'); stamp('c')
stamp_flush()
a('L_end:')
a('s_endpgm')
a('L_codeend:')
vmax = max(vmax, V.hi)
smax = max(S.hi, S2.hi)

hdr = open('gated_mix__ssm_conv_s4__spectral_gfnet__prompt.s.ref').read().split('; Override launch')[0]
nv = 256
src = hdr + f'''; @launch grid=(512,1,1) block=(256,1,1) lds={LDS_BYTES}
; Generated by dev/gen.py. One launch, 512 workgroups: ids 0..255 run the 2-D FFT filter path (three phases joined by
; tagged 16-byte hand-off units in d_ws), ids 256..511 build the S4 kernel and run the causal convolution on MFMA.
.amdgcn_target "amdgcn-amd-amdhsa--gfx950"
.text
.globl {KNAME}
.p2align 8
.type {KNAME},@function
{KNAME}:
''' + a.text() + f'''.section .rodata,"a"
.p2align 6
.amdhsa_kernel {KNAME}
  .amdhsa_next_free_vgpr {nv}
  .amdhsa_next_free_sgpr {max(smax, 16)}
  .amdhsa_accum_offset {nv}
  .amdhsa_group_segment_fixed_size 0
  .amdhsa_kernarg_size 128
  .amdhsa_user_sgpr_count 2
  .amdhsa_user_sgpr_kernarg_segment_ptr 1
  .amdhsa_system_sgpr_workgroup_id_x 1
.end_amdhsa_kernel
'''
open(sys.argv[1], 'w').write(src)
print('vgpr hi', vmax, 'sgpr hi', smax, 'nops', a.nnop, 'lines', len(a.out))
```

```python
import sys, struct, math
from asmlib import Asm, Regs, R

KNAME = 'gated_mix__ssm_conv_s4__spectral_gfnet__prompt_kernel'
OPT = dict(a.split('=') for a in sys.argv[2:] if '=' in a)
def opt(k, d=0): return int(OPT.get(k, d))
STAMP = opt('stamp')

def f2u(x): return '0x%08x' % struct.unpack('<I', struct.pack('<f', x))[0]

XT_B, XT_S = 0x001000, 12416
T1_B, T1_S = 0x310000, 11392
T2_B, T2_S = 0x5E0000, 16512
AT_B, AT_S = 0x8B0000, 12416
WS_USED = 0xC00000
ST_B = 0xB00000 + 0xC0000
SPIN = 20000
LDS_BYTES = 78400

a = Asm()
S = Regs('s', 3, 100)
sWS = S.alloc(4); sTag = S.alloc(1); sIdx = S.alloc(1); sW8 = S.alloc(1); sWave = S.alloc(1)
sT = S.alloc(1); sT2 = S.alloc(1); sSpin = S.alloc(1)
sPc = S.alloc(2)
sStamp = S.alloc(2)
nstamp = [0]
CLK = 's_memtime' if STAMP == 2 else 's_memrealtime'

def stamp(role, V=None):
    if not STAMP: return
    n = nstamp[0]; nstamp[0] += 1
    a(f'{CLK} {sStamp}')
    a('s_waitcnt lgkmcnt(0)')
    a(f'v_writelane_b32 v255, {sStamp[0]}, {n}')

def stamp_flush():
    if not STAMP: return
    a(f'''
    s_lshl_b32 {sT}, s2, 2
    s_add_u32 {sT}, {sT}, {sWave}
    s_lshl_b32 {sT}, {sT}, 6
    s_add_u32 {sT}, {sT}, {ST_B}
    v_and_b32 v254, 63, v0
    v_lshlrev_b32 v254, 2, v254
    s_mov_b64 exec, 0xffff
    buffer_store_dword v255, v254, {sWS}, {sT} offen
    s_mov_b64 exec, -1
    ''')

lab = [0]
def newlab(p):
    lab[0] += 1
    return f'L_{p}{lab[0]}'

def check_retry(loads, tags, vt, vt2):
    L, D = newlab('chk'), newlab('got')
    a(f's_mov_b32 {sSpin}, 0')
    a(f'{L}:')
    a('s_waitcnt vmcnt(0)')
    a(f'v_xor_b32 {vt}, {sTag}, {tags[0]}')
    a(f'v_xor_b32 {vt2}, {sTag}, {tags[1]}')
    if len(tags) == 3:
        a(f'v_xor_b32 {tags[2]}, {sTag}, {tags[2]}')
        a(f'v_or3_b32 {vt}, {vt}, {vt2}, {tags[2]}')
    else:
        a(f'v_xor_b32 {tags[2]}, {sTag}, {tags[2]}')
        a(f'v_xor_b32 {tags[3]}, {sTag}, {tags[3]}')
        a(f'v_or3_b32 {vt}, {vt}, {vt2}, {tags[2]}')
        a(f'v_or_b32 {vt}, {vt}, {tags[3]}')
    a(f'v_cmpx_ne_u32 vcc, 0, {vt}')
    a(f's_cbranch_execz {D}')
    for l in loads: a(l)
    a(f's_add_u32 {sSpin}, {sSpin}, 1')
    a(f's_cmp_lt_u32 {sSpin}, {SPIN}')
    a(f's_cbranch_scc1 {L}')
    a('s_waitcnt vmcnt(0)')
    a(f'{D}:')
    a('s_mov_b64 exec, -1')
    a.forget_vm()

Asm.forget_vm = lambda self: setattr(self, 'vm', [])

def cmul(d, p, z):
    return [f'v_pk_mul_f32 {d}, {p}, {z} op_sel_hi:[0,1]',
            f'v_pk_fma_f32 {d}, {p}, {z}, {d} op_sel:[1,1,0] op_sel_hi:[1,0,1] neg_lo:[1,0,0]']

def twiddle(re, im, C, Sn, tre, tim, out, sign):
    o = []
    for h in (0, 2):
        s = slice(h, h + 2)
        o.append(f'v_pk_mul_f32 {tre[s]}, {re[s]}, {C[s]}')
        o.append(f'v_pk_mul_f32 {tim[s]}, {im[s]}, {C[s]}')
    for h in (0, 2):
        s = slice(h, h + 2)
        n1 = 'neg_lo:[1,0,0] neg_hi:[1,0,0]' if sign > 0 else ''
        n2 = '' if sign > 0 else 'neg_lo:[1,0,0] neg_hi:[1,0,0]'
        o.append(f'v_pk_fma_f32 {tre[s]}, {im[s]}, {Sn[s]}, {tre[s]} {n1}')
        o.append(f'v_pk_fma_f32 {tim[s]}, {re[s]}, {Sn[s]}, {tim[s]} {n2}')
    for r in range(4):
        o.append(f'v_cvt_pk_bf16_f32 {out[r]}, {tre[r]}, {tim[r]}')
    return o

def emit(lst):
    for x in lst: a(x)

def mf16(d, A, B, c): return f'v_mfma_f32_16x16x32_bf16 {d}, {A}, {B}, {c}'
def mf32(d, A, B, c): return f'v_mfma_f32_32x32x16_bf16 {d}, {A}, {B}, {c}'

a(f'''
s_cmp_ge_u32 s2, 512
s_cbranch_scc1 L_end
s_load_dwordx2 {sWS[0:2]}, s[0:1], 120
s_getpc_b64 {sPc}
L_pcref:
s_mov_b32 {sWS[2]}, {WS_USED if not STAMP else 0x1000000}
s_mov_b32 {sWS[3]}, 0x20000
s_and_b32 {sW8}, s2, 7
s_bfe_u32 {sT}, s2, 0x50003
s_lshl_b32 {sIdx}, {sW8}, 5
s_add_u32 {sIdx}, {sIdx}, {sT}
v_lshrrev_b32 v1, 6, v0
s_cmp_ge_u32 s2, 256
v_readfirstlane_b32 {sWave}, v1
s_cbranch_scc1 L_conv
''')

V = Regs('v', 1, 250)
sX = S.alloc(4); sWr = S.alloc(4); sWi = S.alloc(4); sOut = S.alloc(4); sGw = S.alloc(2)
sOff = S.alloc(8)
sGrp = S.alloc(1); sP1 = S.alloc(1); sE = S.alloc(1); sM = S.alloc(1); sH = S.alloc(2); sG = S.alloc(16)
sK = S.alloc(4)
ROWS, T1IMG, WIMG, GPART, GIN, T2IMG, T2IN, YROW = 0, 8192, 20480, 36864, 0, 20480, 0, 20480
GIN_S = 3104

if STAMP:
    a(f'{CLK} {sStamp}')
    nstamp[0] = 1
a(f'''
s_setprio 3
s_load_dwordx2 {sX[0:2]}, s[0:1], 0
s_load_dwordx2 {sWr[0:2]}, s[0:1], 80
s_load_dwordx2 {sWi[0:2]}, s[0:1], 88
s_load_dwordx2 {sGw}, s[0:1], 96
s_load_dwordx2 {sOut[0:2]}, s[0:1], 104
s_mov_b32 {sX[2]}, 0x200000
s_mov_b32 {sX[3]}, 0x20000
s_mov_b32 {sOut[2]}, 0x200000
s_mov_b32 {sOut[3]}, 0x20000
s_mov_b32 {sWr[2]}, 1052672
s_mov_b32 {sWr[3]}, 0x20000
s_mov_b32 {sWi[2]}, 1052672
s_mov_b32 {sWi[3]}, 0x20000
''')
for i in range(1, 8): a(f's_mov_b32 {sOff[i]}, {i*262144}')
XU = V.alloc(12, 4); X = [XU[s + s // 3] for s in range(8)]
GW = V.alloc(1); vT4 = V.alloc(1); vXo = V.alloc(1)
WR = V.alloc(8, 4); WI = V.alloc(8, 4); vWo = V.alloc(1)
l15 = V.alloc(1); vg = V.alloc(1); vlane = V.alloc(1)
a(f'''
s_lshl_b32 {sT}, {sIdx}, 10
v_lshlrev_b32 {vT4}, 2, v0
v_add_u32 {vXo}, {sT}, {vT4}
s_lshr_b32 {sGrp}, s2, 3
s_lshr_b32 {sP1}, {sW8}, 1
s_sub_u32 {sT}, 0, {sP1}
s_cmp_eq_u32 {sW8}, 1
s_cselect_b32 {sT}, 4, {sT}
s_bitcmp1_b32 {sW8}, 0
s_cselect_b32 {sP1}, {sT}, {sP1}
v_lshlrev_b32 {vWo}, 3, v0
v_add_u32 {vWo}, {sP1}, {vWo}
v_and_b32 {vWo}, 2047, {vWo}
v_mul_u32_u24 {vWo}, 514, {vWo}
s_mul_i32 {sT}, {sGrp}, 24
s_cmp_ge_u32 {sGrp}, 22
s_cmov_b32 {sT}, 0x40000000
v_add_u32 {vWo}, {sT}, {vWo}
v_and_b32 {vWo}, -4, {vWo}
v_and_b32 {vlane}, 63, v0
v_and_b32 {l15}, 15, v0
v_bfe_u32 {vg}, v0, 4, 2
s_waitcnt lgkmcnt(0)
''')
if STAMP: a(f'v_writelane_b32 v255, {sStamp[0]}, 0')
for s1 in range(8):
    a(f'buffer_load_dword {X[s1]}, {vXo}, {sX}, {sOff[s1] if s1 else 0} offen')
a(f's_load_dword {sE}, {sWS[0:2]}, 0')
a(f'global_load_dword {GW}, {vT4}, {sGw}')
a(f'''
buffer_load_dwordx4 {WR[0:4]}, {vWo}, {sWr}, 0 offen
buffer_load_dwordx3 {WR[4:7]}, {vWo}, {sWr}, 0 offen offset:16
buffer_load_dwordx4 {WI[0:4]}, {vWo}, {sWi}, 0 offen
buffer_load_dwordx3 {WI[4:7]}, {vWo}, {sWi}, 0 offen offset:16
''')
stamp('f')

fl = V.alloc(1); fg = V.alloc(1); f1 = V.alloc(1); fb = V.alloc(1)
tc = V.alloc(8, 2); ts = V.alloc(8, 2); rv = V.alloc(8, 2)
B1re = [V.alloc(4, 4) for _ in range(2)]; B1im = [V.alloc(4, 4) for _ in range(2)]
TWc = [V.alloc(4, 2) for _ in range(2)]; TWs = [V.alloc(4, 2) for _ in range(2)]
M1 = V.alloc(4, 4); M2 = V.alloc(4, 4); M3 = V.alloc(4, 4); M4 = V.alloc(4, 4); MN1 = V.alloc(4, 4); MN2 = V.alloc(4, 4)
aTk = [[V.alloc(1) for j in range(2)] for cb in range(2)]; aNy = V.alloc(1); aTr = V.alloc(1); aRd = V.alloc(1)
vSt = V.alloc(1); vSt3 = V.alloc(1)
a(f'''
v_cvt_f32_u32 {fl}, {l15}
v_cvt_f32_u32 {fg}, {vg}
v_mul_f32 {fg}, 4.0, {fg}
v_mul_f32 {f1}, {f2u(1/32)}, {fl}
v_mul_f32 {fb}, {f1}, {fg}
''')
for e in range(8):
    k = 16 * (e >> 2) + (e & 3)
    a(f'v_fmamk_f32 {rv[e]}, {f1}, {f2u(float(k))}, {fb}')
for e in range(8):
    a(f'v_cos_f32 {tc[e]}, {rv[e]}'); a(f'v_sin_f32 {ts[e]}, {rv[e]}')
for i in range(4):
    a(f'v_cvt_pk_bf16_f32 {B1re[0][i]}, {tc[2*i]}, {tc[2*i+1]}')
    a(f'v_cvt_pk_bf16_f32 {B1im[0][i]}, -{ts[2*i]}, -{ts[2*i+1]}')
for i in range(4):
    a(f'v_xor_b32 {B1re[1][i]}, 0x80000000, {B1re[0][i]}')
    a(f'v_xor_b32 {B1im[1][i]}, 0x80000000, {B1im[0][i]}')
for cb in range(2):
    if cb == 0: a(f'v_mul_f32 {f1}, {f2u(1/512)}, {fl}')
    else: a(f'v_add_f32 {f1}, {f2u(16/512)}, {f1}')
    a(f'v_mul_f32 {fb}, {f1}, {fg}')
    for r in range(4): a(f'v_fmamk_f32 {rv[4*cb+r]}, {f1}, {f2u(float(r))}, {fb}')
for cb in range(2):
    for r in range(4):
        a(f'v_cos_f32 {TWc[cb][r]}, {rv[4*cb+r]}'); a(f'v_sin_f32 {TWs[cb][r]}, {rv[4*cb+r]}')
a(f'''
v_lshrrev_b32 {f1}, 1, {l15}
v_and_b32 {fb}, 1, {l15}
v_cvt_f32_u32 {f1}, {f1}
v_cvt_f32_u32 {fb}, {fb}
v_mul_f32 {f1}, {f2u(1/16)}, {f1}
v_mul_f32 {fb}, 0.25, {fb} ; placeholder
''') if False else None
a(f'''
v_lshrrev_b32 {f1}, 1, {l15}
v_and_b32 {fb}, 1, {l15}
v_cvt_f32_u32 {f1}, {f1}
v_cvt_f32_u32 {fb}, {fb}
v_mul_f32 {f1}, {f2u(1/16)}, {f1}
v_mul_f32 {fb}, {f2u(0.25)}, {fb}
v_fmac_f32 {fb}, {f1}, {fg}
s_cmp_lg_u32 {sWave}, 0
s_cselect_b32 {sM}, -1, 0
''')
for r in range(4): a(f'v_fmamk_f32 {rv[r]}, {f1}, {f2u(float(r))}, {fb}')
for r in range(4):
    a(f'v_cos_f32 {tc[r]}, {rv[r]}'); a(f'v_sin_f32 {ts[r]}, {rv[r]}')
for r in range(4):
    a(f'v_cvt_pk_bf16_f32 {M1[r]}, {tc[r]}, {ts[r]}')
    a(f'v_cvt_pk_bf16_f32 {M2[r]}, {ts[r]}, -{tc[r]}')
    a(f'v_cvt_pk_bf16_f32 {M4[r]}, -{ts[r]}, {tc[r]}')
for r in range(4):
    a(f'v_and_b32 {M2[r]}, {sM}, {M2[r]}')
    a(f'v_and_b32 {M3[r]}, {sM}, {M1[r]}')
    a(f'v_bfi_b32 {M4[r]}, {sM}, {M4[r]}, {M1[r]}')
a(f'''
s_cmp_lg_u32 {sWave}, 0
s_cselect_b32 {sT}, 0x11, 0x01
s_cselect_b32 {sT2}, 0xc4, 0x10
v_lshlrev_b32 {f1}, 1, {l15}
v_bfe_i32 {tc[0]}, {sT}, {f1}, 2
v_bfe_i32 {tc[1]}, {sT2}, {f1}, 2
v_cvt_f32_i32 {tc[0]}, {tc[0]}
v_cvt_f32_i32 {tc[1]}, {tc[1]}
v_lshrrev_b32 {MN1[0]}, 16, {tc[0]}
v_lshrrev_b32 {MN2[0]}, 16, {tc[1]}
v_xor_b32 {MN1[1]}, 0x8000, {MN1[0]}
v_xor_b32 {MN2[1]}, 0x8000, {MN2[0]}
v_mov_b32 {MN1[2]}, {MN1[0]}
v_mov_b32 {MN2[2]}, {MN2[0]}
v_mov_b32 {MN1[3]}, {MN1[1]}
v_mov_b32 {MN2[3]}, {MN2[1]}
''')
a(f'''
s_mul_i32 {sT}, {sWave}, 2816
s_add_u32 {sT}, {sT}, {T1IMG}
v_lshl_add_u32 {f1}, {vg}, 6, {l15}
''')
for cb in range(2):
    for j in range(2):
        k0 = 16 * cb + 32 * j
        a(f'v_add_u32 {fb}, {k0}, {f1}')
        a(f'v_mul_u32_u24 {aTk[cb][j]}, 171, {fb}')
        a(f'v_lshrrev_b32 {aTk[cb][j]}, 9, {aTk[cb][j]}')
        a(f'v_add_u32 {fb}, {fb}, {aTk[cb][j]}')
        a(f'v_lshl_add_u32 {aTk[cb][j]}, {fb}, 2, {sT}')
a(f'''
v_min_u32 {aNy}, 1, {vlane}
v_add_u32 {aNy}, 341, {aNy}
v_lshl_add_u32 {aNy}, {aNy}, 2, {sT}
s_lshl_b32 {sT}, {sWave}, 11
v_lshl_add_u32 {aTr}, {vlane}, 3, {sT}
v_lshlrev_b32 {aRd}, 4, v0
s_mul_i32 {sT}, {sIdx}, {XT_S}
s_add_u32 {sK[0]}, {sT}, {XT_B}
s_add_u32 {sK[1]}, {sK[0]}, 4096
s_add_u32 {sK[2]}, {sK[0]}, 8192
s_mov_b32 {sH[0]}, {f2u(math.sqrt(0.5))}
s_waitcnt lgkmcnt(0)
s_mul_i32 {sTag}, {sE}, 0x9E3779B1
s_add_u32 {sTag}, {sTag}, 0x7F4A7C15
v_mov_b32 {XU[3]}, {sTag}
v_mov_b32 {XU[7]}, {sTag}
v_mov_b32 {XU[11]}, {sTag}
v_mov_b32 {XU[10]}, 0
; third T1 store: waves 0..2 only (wave 3 is pushed out of range)
s_cmp_eq_u32 {sWave}, 3
s_cselect_b32 {sT}, 0x40000000, 0
v_add_u32 {vSt3}, {sT}, {aRd}
''')
TU = V.alloc(12, 4)
for i in range(3): a(f'v_mov_b32 {TU[4*i+3]}, {sTag}')
stamp('f')

P = [V.alloc(2, 2) for _ in range(8)]; A_ = [V.alloc(2, 2) for _ in range(8)]
for s in (0, 4, 2, 6, 1, 5, 3, 7):
    a(f'v_lshlrev_b32 {P[s][0]}, 16, {X[s]}')
    a(f'v_and_b32 {P[s][1]}, 0xffff0000, {X[s]}')
for u in range(3):
    a(f'buffer_store_dwordx4 {XU[4*u:4*u+4]}, {aRd}, {sWS}, {sK[u]} offen sc1')
NEG1 = 'neg_lo:[0,1] neg_hi:[0,1]'
if OPT.get('only') == 'conv':
    stamp_flush(); a('s_endpgm')
for i in (0, 2, 1, 3):
    a(f'v_pk_add_f32 {A_[i]}, {P[i]}, {P[i+4]}')
    a(f'v_pk_add_f32 {A_[i+4]}, {P[i]}, {P[i+4]} {NEG1}')
aa, bb = A_[:4], A_[4:]
c0, c1, Re2, Im2, t1, t2, Ra, Rb = P
O = V.alloc(8)
def row_out(q, src):
    a(f'v_cvt_pk_bf16_f32 {O[q]}, {src[0]}, {src[1]}')
    a(f'ds_write_b32 {vT4}, {O[q]} offset:{ROWS + q*1024}')
a(f'''
v_pk_add_f32 {c0}, {aa[0]}, {aa[2]}
v_pk_add_f32 {c1}, {aa[1]}, {aa[3]}
v_pk_add_f32 {Re2}, {aa[0]}, {aa[2]} {NEG1}
v_pk_add_f32 {Im2}, {aa[3]}, {aa[1]} {NEG1}
v_pk_add_f32 {t1}, {bb[1]}, {bb[3]} {NEG1}
v_pk_add_f32 {t2}, {bb[1]}, {bb[3]}
v_pk_add_f32 {Ra}, {c0}, {c1}
v_pk_add_f32 {Rb}, {c0}, {c1} {NEG1}
''')
row_out(4, Re2); row_out(5, Im2)
a(f'''
v_pk_fma_f32 {aa[0]}, {t1}, {sH}, {bb[0]} op_sel_hi:[1,0,1]
v_pk_fma_f32 {aa[1]}, {t2}, {sH}, {bb[2]} op_sel_hi:[1,0,1] neg_lo:[1,0,1] neg_hi:[1,0,1]
v_pk_fma_f32 {aa[2]}, {t1}, {sH}, {bb[0]} op_sel_hi:[1,0,1] neg_lo:[1,0,0] neg_hi:[1,0,0]
v_pk_fma_f32 {aa[3]}, {t2}, {sH}, {bb[2]} op_sel_hi:[1,0,1] neg_lo:[1,0,0] neg_hi:[1,0,0]
''')
row_out(0, Ra); row_out(1, Rb); row_out(2, aa[0]); row_out(3, aa[1]); row_out(6, aa[2]); row_out(7, aa[3])
a.barrier()
stamp('f')
V.release(*P, *A_, O)
AF = [V.alloc(4, 4) for _ in range(2)]
for q in range(2):
    for i in range(2):
        a(f'ds_read_b64_tr_b16 {AF[q][2*i:2*i+2]}, {aTr} offset:{ROWS + q*1024 + i*512}')
Dre = [[V.alloc(4, 4) for cb in range(2)] for q in range(2)]; Dim = [[V.alloc(4, 4) for cb in range(2)] for q in range(2)]
for q in range(2):
    for cb in range(2):
        a(mf16(Dre[q][cb], AF[q], B1re[cb], 0)); a(mf16(Dim[q][cb], AF[q], B1im[cb], 0))
tre = V.alloc(4, 2); tim = V.alloc(4, 2)
BQ = [[V.alloc(4, 4) for cb in range(2)] for q in range(2)]
F = [[V.alloc(4, 4) for cb in range(2)] for s in range(2)]; FN = V.alloc(4, 4)
MM = [[M1, M2], [M3, M4]]
for q in range(2):
    for cb in range(2):
        emit(twiddle(Dre[q][cb], Dim[q][cb], TWc[cb], TWs[cb], tre, tim, BQ[q][cb], -1))
        for s in range(2):
            a(mf16(F[s][cb], MM[s][q], BQ[q][cb], 0 if q == 0 else F[s][cb]))
        if cb == 0: a(mf16(FN, (MN1, MN2)[q], BQ[q][0], 0 if q == 0 else FN))
o2 = V.alloc(10)
a(f'v_cvt_pk_bf16_f32 {o2[8]}, {FN[0]}, {FN[1]}'); a(f'v_cvt_pk_bf16_f32 {o2[9]}, {FN[2]}, {FN[3]}')
a(f'ds_write_b32 {aNy}, {o2[8]}'); a(f'ds_write_b32 {aNy}, {o2[9]} offset:1408')
for cb in range(2):
    for s in range(2):
        for j in range(2):
            o = o2[4*cb + 2*s + j]
            a(f'v_cvt_pk_bf16_f32 {o}, {F[s][cb][2*j]}, {F[s][cb][2*j+1]}')
            a(f'ds_write_b32 {aTk[cb][j]}, {o} offset:{1408*s}')
a(f'''
s_mul_i32 {sT}, {sIdx}, {T1_S}
s_add_u32 {sK[0]}, {sT}, {T1_B}
s_add_u32 {sK[1]}, {sK[0]}, 4096
s_add_u32 {sK[2]}, {sK[0]}, 8192
''')
a.barrier()
for i in range(3): a(f'ds_read_b96 {TU[4*i:4*i+3]}, {aRd} offset:{T1IMG + 4096*i}')
for i in range(3): a(f'buffer_store_dwordx4 {TU[4*i:4*i+4]}, {aRd if i < 2 else vSt3}, {sWS}, {sK[i]} offen sc1')
stamp('f')
V.release(*AF, *Dre[0], *Dre[1], *Dim[0], *Dim[1], *BQ[0], *BQ[1], *F[0], *F[1], FN, o2)
V.release(*B1re, *B1im, *TWc, *TWs, M1, M2, M3, M4, MN1, MN2, *aTk[0], *aTk[1], aNy, aTr)

G = V.alloc(8)
for s in range(8): a(f'v_dot2_f32_bf16 {G[s]}, {X[s]}, {GW}, 0')
gt = V.alloc(4)
for i in range(4):
    a(f'v_add_f32_dpp {gt[i]}, {G[2*i]}, {G[2*i]} row_ror:4 row_mask:0xf bank_mask:0x5')
    a(f'v_add_f32_dpp {gt[i]}, {G[2*i+1]}, {G[2*i+1]} row_ror:4 row_mask:0xf bank_mask:0xa')
for i in range(2):
    a(f'v_add_f32_dpp {G[i]}, {gt[2*i]}, {gt[2*i]} row_ror:8 row_mask:0xf bank_mask:0x3')
    a(f'v_add_f32_dpp {G[i]}, {gt[2*i+1]}, {gt[2*i+1]} row_ror:8 row_mask:0xf bank_mask:0xc')
a(f'''
v_permlane16_swap_b32 {G[0]}, {G[1]}
v_add_f32 {G[0]}, {G[0]}, {G[1]}
v_mov_b32 {G[1]}, {G[0]}
v_permlane32_swap_b32 {G[0]}, {G[1]}
v_add_f32 {G[0]}, {G[0]}, {G[1]}
v_add_f32_dpp {G[0]}, {G[0]}, {G[0]} quad_perm:[1,0,3,2] row_mask:0xf bank_mask:0xf
v_add_f32_dpp {G[0]}, {G[0]}, {G[0]} quad_perm:[2,3,0,1] row_mask:0xf bank_mask:0xf
v_and_b32 {G[2]}, 28, v0
s_lshl_b32 {sT}, {sWave}, 5
v_add_u32 {G[2]}, {sT}, {G[2]}
ds_write_b32 {G[2]}, {G[0]} offset:{GPART}
''')
CW = V.alloc(16, 4)
a(f'''
s_waitcnt vmcnt(6)
s_cmp_ge_u32 {sGrp}, 22
s_cbranch_scc1 L_now2
s_and_b32 {sT}, {sP1}, 1
s_lshl_b32 {sT}, {sT}, 4
s_mov_b32 {sT2}, 0x05040100
s_mov_b32 {sM}, 0x07060302
''')
for i in range(6):
    a(f'v_alignbit_b32 {WR[i]}, {WR[i+1]}, {WR[i]}, {sT}')
    a(f'v_alignbit_b32 {WI[i]}, {WI[i+1]}, {WI[i]}, {sT}')
for c in range(12):
    a(f'v_perm_b32 {CW[4*(c//3) + c%3]}, {WI[c//2]}, {WR[c//2]}, {sM if c & 1 else sT2}')
for u in range(4): a(f'ds_write_b96 {aRd}, {CW[4*u:4*u+3]} offset:{WIMG + 4096*u}')
a('L_now2:')
a('s_waitcnt lgkmcnt(0)')
a('s_barrier')
stamp('f')
V.release(WR, WI, vWo, GW, gt)
a(f'''
v_and_b32 {G[2]}, 7, v0
v_lshlrev_b32 {G[2]}, 2, {G[2]}
''')
for i in range(4): a(f'ds_read_b32 {G[4+i]}, {G[2]} offset:{GPART + 32*i}')
a(f'''
v_add_f32 {G[4]}, {G[4]}, {G[5]}
v_add_f32 {G[6]}, {G[6]}, {G[7]}
v_add_f32 {G[4]}, {G[4]}, {G[6]}
v_mul_f32 {G[4]}, {f2u(-1/math.log(2))}, {G[4]}
v_exp_f32 {G[4]}, {G[4]}
v_add_f32 {G[4]}, 1.0, {G[4]}
v_rcp_f32 {G[4]}, {G[4]}
v_sub_f32 {G[5]}, 1.0, {G[4]}
''')
for s in range(8):
    a(f'v_readlane_b32 {sG[2*s]}, {G[4]}, {s}'); a(f'v_readlane_b32 {sG[2*s+1]}, {G[5]}, {s}')
V.release(G)
a(f'''
s_cmp_ge_u32 {sGrp}, 22
s_cbranch_scc1 L_p3
''')

p2start = nstamp[0]
WQ = CW
aWq = V.alloc(1)
a(f'''
v_lshl_add_u32 {aWq}, {vg}, 6, {l15}
v_lshlrev_b32 {aWq}, 4, {aWq}
s_lshl_b32 {sT}, {sWave}, 12
v_add_u32 {aWq}, {sT}, {aWq}
''')
for r in range(4): a(f'ds_read_b96 {WQ[4*r:4*r+3]}, {aWq} offset:{WIMG + 256*r}')
S1re = V.alloc(4, 4); S1im = V.alloc(4, 4); S2re = V.alloc(4, 4); S2im = V.alloc(4, 4)
S3re = V.alloc(4, 4); S3im = V.alloc(4, 4); S4re = V.alloc(4, 4); S4im = V.alloc(4, 4)
T1c = V.alloc(4, 2); T1s = V.alloc(4, 2); T2c = V.alloc(4, 2); T2s = V.alloc(4, 2)
Wc = [V.alloc(4, 2) for _ in range(3)]; Ws = [V.alloc(4, 2) for _ in range(3)]
fq = V.alloc(1); fp1 = V.alloc(1)
a(f'''
v_cvt_f32_i32 {fp1}, {sP1}
v_fmamk_f32 {fq}, {fl}, {f2u(8.0)}, {fp1}
''')
def angles(dst, f, base, n=4):
    for r in range(n): a(f'v_fmamk_f32 {dst[r]}, {f}, {f2u(float(r))}, {base}')
def cossin(c, s, ang, n=4):
    for r in range(n):
        a(f'v_cos_f32 {c[r]}, {ang[r]}'); a(f'v_sin_f32 {s[r]}, {ang[r]}')
a(f'v_mul_f32 {f1}, {f2u(1/128)}, {fq}'); a(f'v_mul_f32 {fb}, {f1}, {fg}')
angles(rv, f1, fb)
for r in range(4): a(f'v_mul_f32 {rv[4+r]}, {f2u(1/16)}, {rv[r]}')
cossin(tc, ts, rv); cossin(T1c, T1s, rv[4:8])
for r in range(4):
    a(f'v_cvt_pk_bf16_f32 {S1re[r]}, {tc[r]}, {ts[r]}'); a(f'v_cvt_pk_bf16_f32 {S1im[r]}, -{ts[r]}, {tc[r]}')
a(f'v_mul_f32 {f1}, {f2u(1/16)}, {fl}'); a(f'v_mul_f32 {fb}, {f1}, {fg}')
angles(rv, f1, fb); cossin(tc, ts, rv)
for r in range(4):
    a(f'v_cvt_pk_bf16_f32 {S2re[r]}, {tc[r]}, {ts[r]}'); a(f'v_cvt_pk_bf16_f32 {S2im[r]}, -{ts[r]}, {tc[r]}')
    a(f'v_cvt_pk_bf16_f32 {S3re[r]}, {tc[r]}, -{ts[r]}'); a(f'v_cvt_pk_bf16_f32 {S3im[r]}, {ts[r]}, {tc[r]}')
a(f'''
v_fmamk_f32 {fb}, {fg}, {f2u(8.0)}, {fp1}
v_mul_f32 {fb}, {fb}, {fl}
v_mul_f32 {fb}, {f2u(1/128)}, {fb}
''')
angles(rv, f1, fb)
for r in range(4): a(f'v_mul_f32 {rv[4+r]}, {f2u(1/16)}, {rv[r]}')
cossin(tc, ts, rv); cossin(T2c, T2s, rv[4:8])
for r in range(4):
    a(f'v_cvt_pk_bf16_f32 {S4re[r]}, {tc[r]}, -{ts[r]}'); a(f'v_cvt_pk_bf16_f32 {S4im[r]}, {ts[r]}, {tc[r]}')
for k in range(3):
    for r in range(4):
        a(f'v_lshlrev_b32 {Wc[k][r]}, 16, {WQ[4*r+k]}'); a(f'v_and_b32 {Ws[k][r]}, 0xffff0000, {WQ[4*r+k]}')
a(f'''
s_or_b32 {sT}, {sGrp}, {sWave}
s_cmp_eq_u32 {sT}, 0
s_cselect_b32 {sH[1]}, 0.5, 1.0
''')
for h in (0, 2):
    a(f'v_pk_mul_f32 {Wc[0][h:h+2]}, {Wc[0][h:h+2]}, {sH} op_sel:[0,1]')
    a(f'v_pk_mul_f32 {Ws[0][h:h+2]}, {Ws[0][h:h+2]}, {sH} op_sel:[0,1]')
aG = V.alloc(1); aGw = V.alloc(1); aGr = V.alloc(1); aUw = V.alloc(1); aUr = V.alloc(1)
L = CW
vt = V.alloc(1); vt2 = V.alloc(1)
a(f'''
v_bfe_u32 {vt}, v0, 2, 4
s_lshl_b32 {sT}, {sWave}, 6
v_add_u32 {vt}, {sT}, {vt}
v_mul_u32_u24 {aG}, {T1_S}, {vt}
v_and_b32 {vt}, 3, v0
v_lshl_add_u32 {aG}, {vt}, 4, {aG}
s_mul_i32 {sT}, {sW8}, 22
s_add_u32 {sT}, {sT}, {sGrp}
s_lshl_b32 {sK[0]}, {sT}, 6
s_add_u32 {sK[0]}, {sK[0]}, {T1_B}
s_add_u32 {sK[1]}, {sK[0]}, {16*T1_S}
s_add_u32 {sK[2]}, {sK[0]}, {32*T1_S}
s_add_u32 {sK[3]}, {sK[0]}, {48*T1_S}
s_mul_i32 {sE}, {sT}, {T2_S}
s_add_u32 {sE}, {sE}, {T2_B}
v_mul_u32_u24 {aGw}, {GIN_S}, {vt}
v_lshrrev_b32 {vt2}, 2, v0
v_lshl_add_u32 {aGw}, {vt2}, 4, {aGw}
s_mul_i32 {sT}, {sWave}, {GIN_S}
v_lshl_add_u32 {aGr}, {vlane}, 4, {sT}
v_lshrrev_b32 {aUw}, 1, {l15}
v_add_u32 {aUw}, {sWave}, {aUw}
v_and_b32 {aUw}, 3, {aUw}
v_lshlrev_b32 {aUw}, 4, {aUw}
v_lshl_add_u32 {aUr}, {vg}, 6, {l15}
v_lshl_add_u32 {aUw}, {aUr}, 6, {aUw}
v_lshrrev_b32 {aUr}, 3, v0
v_add_u32 {aUr}, {aUr}, v0
v_and_b32 {aUr}, 3, {aUr}
v_lshlrev_b32 {aUr}, 4, {aUr}
v_lshl_add_u32 {aUr}, {vt2}, 6, {aUr}
''')
UU = V.alloc(16, 4)
for r in range(4): a(f'v_mov_b32 {UU[4*r+3]}, {sTag}')
stamp('f')
loads = [f'buffer_load_dwordx4 {L[4*i:4*i+4]}, {aG}, {sWS}, {sK[i]} offen sc1' for i in range(4)]
a('s_waitcnt vmcnt(0)')
emit(loads)
check_retry(loads, [L[4*i+3] for i in range(4)], vt, vt2)
stamp('f')
for i in range(4):
    for j in range(i + 1, 4): a(f'v_swap_b32 {L[4*i+j]}, {L[4*j+i]}')
for k in range(3): a(f'ds_write_b128 {aGw}, {L[4*k:4*k+4]} offset:{GIN + 1024*k}')
a.barrier()
for k in range(3): a(f'ds_read_b128 {L[4*k:4*k+4]}, {aGr} offset:{GIN + 1024*k}')
D1 = [V.alloc(4, 4) for _ in range(3)]; D2 = [V.alloc(4, 4) for _ in range(3)]
Z = [L[4*k:4*k+4] for k in range(3)]
for k in range(3):
    a(mf16(D1[k], Z[k], S1re, 0)); a(mf16(D2[k], Z[k], S1im, 0))
for k in range(3):
    emit(twiddle(D1[k], D2[k], T1c, T1s, tre, tim, Z[k], -1))
    a(mf16(D1[k], S2re, Z[k], 0)); a(mf16(D2[k], S2im, Z[k], 0))
for k in range(3):
    emit(twiddle(D1[k], D2[k], Wc[k], Ws[k], tre, tim, Z[k], +1))
    a(mf16(D1[k], Z[k], S3re, 0)); a(mf16(D2[k], Z[k], S3im, 0))
for k in range(3):
    emit(twiddle(D1[k], D2[k], T2c, T2s, tre, tim, Z[k], +1))
    a(mf16(D1[k], S4re, Z[k], 0)); a(mf16(D2[k], S4im, Z[k], 0))
for k in range(3):
    for r in range(4): a(f'v_cvt_pk_bf16_f32 {UU[4*r+k]}, {D1[k][r]}, {D2[k][r]}')
for r in range(4): a(f'ds_write_b128 {aUw}, {UU[4*r:4*r+4]} offset:{T2IMG + 1024*r}')
a(f'''
s_add_u32 {sK[1]}, {sE}, 4096
s_add_u32 {sK[2]}, {sE}, 8192
s_add_u32 {sK[3]}, {sE}, 12288
''')
a.barrier()
for i in range(4): a(f'ds_read_b128 {UU[4*i:4*i+4]}, {aUr} offset:{T2IMG + 4096*i}')
for i in range(4): a(f'buffer_store_dwordx4 {UU[4*i:4*i+4]}, {aRd}, {sWS}, {sK[i] if i else sE} offen sc1')
stamp('f')
a('L_p3:')
V.release(S1re, S1im, S2re, S2im, S3re, S3im, S4re, S4im, T1c, T1s, T2c, T2s, *Wc, *Ws, fq, fp1, aG, aGw, aGr, aUw, aUr, aWq, *D1, *D2, UU)
p2end = nstamp[0]

B1 = [[V.alloc(4, 4) for c in range(2)] for q in range(2)]
T3c = [V.alloc(4, 2) for _ in range(2)]; T3s = [V.alloc(4, 2) for _ in range(2)]
B2 = [[V.alloc(4, 4) for db in range(2)] for blk in range(2)]
AN = [V.alloc(4, 4) for q in range(2)]
NB = V.alloc(4, 4)
msk = V.alloc(2); dl = V.alloc(1)
a(f'''
s_cmp_lg_u32 {sWave}, 0
s_cselect_b32 {sM}, -1, 0
s_cselect_b32 {sT}, {f2u(0.25)}, 0
v_and_b32 {fb}, 1, {vg}
v_cvt_f32_u32 {fb}, {fb}
v_mul_f32 {f1}, {f2u(1/16)}, {fl}
v_mul_f32 {fb}, 4.0, {fb}
v_mul_f32 {fb}, {fb}, {f1}
v_bfe_i32 {msk[1]}, {vg}, 1, 1
v_not_b32 {msk[0]}, {msk[1]}
v_and_b32 {dl}, 0x80000000, {msk[1]}
v_or_b32 {dl}, {sT}, {dl}
v_or_b32 {msk[0]}, {sM}, {msk[0]}
v_or_b32 {msk[1]}, {sM}, {msk[1]}
''')
angles(rv, f1, fb)
for r in range(4): a(f'v_add_f32 {rv[4+r]}, {rv[r]}, {dl}')
cossin(tc, ts, rv, 8)
for q in range(2):
    for r in range(4):
        a(f'v_cvt_pk_bf16_f32 {B1[q][0][r]}, {tc[4*q+r]}, -{ts[4*q+r]}')
        a(f'v_cvt_pk_bf16_f32 {B1[q][1][r]}, {ts[4*q+r]}, {tc[4*q+r]}')
for q in range(2):
    for r in range(4):
        a(f'v_and_b32 {B1[q][0][r]}, {msk[q]}, {B1[q][0][r]}')
        a(f'v_and_b32 {B1[q][1][r]}, {msk[q]}, {B1[q][1][r]}')
a(f'v_mul_f32 {f1}, {f2u(1/512)}, {fl}'); a(f'v_mul_f32 {fb}, {f1}, {fg}')
angles(rv, f1, fb)
for r in range(4): a(f'v_fmamk_f32 {rv[4+r]}, {f1}, {f2u(16.0)}, {rv[r]}')
for blk in range(2): cossin(T3c[blk], T3s[blk], rv[4*blk:4*blk+4])
a(f's_mov_b32 {sH[1]}, {f2u(2.0**-19)}')
for blk in range(2):
    for h in (0, 2):
        a(f'v_pk_mul_f32 {T3c[blk][h:h+2]}, {T3c[blk][h:h+2]}, {sH} op_sel:[0,1]')
        a(f'v_pk_mul_f32 {T3s[blk][h:h+2]}, {T3s[blk][h:h+2]}, {sH} op_sel:[0,1]')
a(f'v_mul_f32 {f1}, {f2u(1/32)}, {fl}'); a(f'v_mul_f32 {fb}, {f1}, {fg}')
angles(rv, f1, fb); cossin(tc, ts, rv)
a(f'v_bfe_i32 {dl}, {l15}, 0, 1'); a(f'v_and_b32 {dl}, 0x80008000, {dl}')
for r in range(4): a(f'v_cvt_pk_bf16_f32 {B2[0][0][r]}, {tc[r]}, -{ts[r]}')
for r in range(4):
    a(f'v_xor_b32 {B2[1][0][r]}, {dl}, {B2[0][0][r]}')
    if r & 1: a(f'v_xor_b32 {B2[0][1][r]}, 0x80008000, {B2[0][0][r]}')
    else: a(f'v_mov_b32 {B2[0][1][r]}, {B2[0][0][r]}')
for r in range(4): a(f'v_xor_b32 {B2[1][1][r]}, {dl}, {B2[0][1][r]}')
a(f'''
s_cmp_lg_u32 {sWave}, 0
s_cselect_b32 {sK[0]}, 0x3580, 0
s_cselect_b32 {sK[1]}, 0xb5800000, 0
s_mov_b32 {sK[2]}, 0x3580
s_cmov_b32 {sK[2]}, 0x35800000
v_cmp_eq_u32 vcc, 0, {vg}
v_xor_b32 {tc[0]}, 0x3580, {dl}
v_xor_b32 {tc[1]}, {sK[0]}, {dl}
v_xor_b32 {tc[2]}, {sK[1]}, {dl}
v_xor_b32 {tc[3]}, {sK[2]}, {dl}
v_cndmask_b32 {AN[0][0]}, 0, {tc[0]}, vcc
v_cndmask_b32 {AN[0][1]}, 0, {tc[1]}, vcc
v_cndmask_b32 {AN[1][0]}, 0, {tc[2]}, vcc
v_cndmask_b32 {AN[1][1]}, 0, {tc[3]}, vcc
v_mov_b32 {AN[0][2]}, 0
v_mov_b32 {AN[0][3]}, 0
v_mov_b32 {AN[1][2]}, 0
v_mov_b32 {AN[1][3]}, 0
v_mov_b32 {NB[2]}, 0
v_mov_b32 {NB[3]}, 0
''')
g1 = V.alloc(1); g3 = V.alloc(1); w3 = V.alloc(1); aA = V.alloc(1); aF = V.alloc(3); aN = V.alloc(1); aYw = V.alloc(1); aYr = V.alloc(1)
a(f'''
v_lshrrev_b32 {vt}, 2, v0
v_mul_u32_u24 {g1}, {T2_S}, {vt}
v_and_b32 {vt2}, 3, v0
v_lshl_add_u32 {g1}, {vt2}, 4, {g1}
v_add_u32 {w3}, 512, v0
v_min_u32 {w3}, 703, {w3}
v_lshrrev_b32 {vt}, 2, {w3}
v_mul_u32_u24 {g3}, {T2_S}, {vt}
v_and_b32 {vt2}, 3, {w3}
v_lshl_add_u32 {g3}, {vt2}, 4, {g3}
v_lshlrev_b32 {w3}, 4, {w3}
s_lshl_b32 {sK[0]}, {sIdx}, 6
s_add_u32 {sK[0]}, {sK[0]}, {T2_B}
s_add_u32 {sK[1]}, {sK[0]}, {64*T2_S}
v_mul_u32_u24 {aA}, {AT_S}, v0
s_lshl_b32 {sK[2]}, {sIdx}, 4
s_add_u32 {sK[2]}, {sK[2]}, {AT_B}
s_add_u32 {sK[3]}, {sK[2]}, 4096
s_add_u32 {sE}, {sK[2]}, 8192
v_and_b32 {vt}, 1, {vg}
v_lshl_add_u32 {vt}, {vt}, 7, {l15}
v_lshrrev_b32 {vt2}, 1, {vg}
v_mul_u32_u24 {vt2}, 1408, {vt2}
s_mul_i32 {sT}, {sWave}, 2816
v_add_u32 {vt2}, {sT}, {vt2}
''')
for j in range(3):
    a(f'v_add_u32 {fb}, {16*j}, {vt}')
    a(f'v_mul_u32_u24 {aF[j]}, 171, {fb}')
    a(f'v_lshrrev_b32 {aF[j]}, 9, {aF[j]}')
    a(f'v_add_u32 {fb}, {fb}, {aF[j]}')
    a(f'v_lshl_add_u32 {aF[j]}, {fb}, 2, {vt2}')
a(f'''
v_mov_b32 {aN}, {sT}
v_bfe_u32 {vt}, {l15}, 1, 2
v_xor_b32 {vt}, {vt}, {vg}
v_lshlrev_b32 {vt}, 4, {vt}
v_lshl_add_u32 {aYw}, {l15}, 6, {vt}
s_lshl_b32 {sT}, {sWave}, 12
v_add_u32 {aYw}, {sT}, {aYw}
v_lshrrev_b32 {vt}, 3, v0
v_xor_b32 {vt}, {vt}, v0
v_and_b32 {vt}, 6, {vt}
v_and_b32 {vt2}, 1, v0
v_or_b32 {vt}, {vt}, {vt2}
v_lshlrev_b32 {vt}, 3, {vt}
v_lshrrev_b32 {vt2}, 3, v0
v_lshl_add_u32 {aYr}, {vt2}, 6, {vt}
''')
L3 = TU
loads = [f'buffer_load_dwordx4 {L3[0:4]}, {g1}, {sWS}, {sK[0]} offen sc1',
         f'buffer_load_dwordx4 {L3[4:8]}, {g1}, {sWS}, {sK[1]} offen sc1',
         f'buffer_load_dwordx4 {L3[8:12]}, {g3}, {sWS}, {sK[0]} offen sc1']
a('s_waitcnt vmcnt(0)')
a(f'''
s_cmp_lt_u32 {sGrp}, 22
s_cbranch_scc1 L_t2go
s_mov_b64 exec, 1
s_mov_b32 {sSpin}, 0
L_canary:
buffer_load_dwordx4 {L3[0:4]}, {g1}, {sWS}, {sK[1]} offen sc1
s_add_u32 {sSpin}, {sSpin}, 1
s_waitcnt vmcnt(0)
v_cmp_ne_u32 vcc, {sTag}, {L3[3]}
s_cbranch_vccz L_canok
s_sleep 4
s_cmp_lt_u32 {sSpin}, {SPIN}
s_cbranch_scc1 L_canary
L_canok:
s_mov_b64 exec, -1
L_t2go:
''')
stamp('f')
emit(loads)
check_retry(loads, [L3[3], L3[7], L3[11]], vt, vt2)
stamp('f')
AU = XU
aloads = [f'buffer_load_dwordx4 {AU[4*u:4*u+4]}, {aA}, {sWS}, {(sK[2], sK[3], sE)[u]} offen sc1' for u in range(3)]
a(f'ds_write_b128 {aRd}, {L3[0:4]} offset:{T2IN}')
a(f'ds_write_b128 {aRd}, {L3[4:8]} offset:{T2IN + 4096}')
a(f'ds_write_b128 {w3}, {L3[8:12]} offset:{T2IN}')
emit(aloads)
a.barrier()
AF = [V.alloc(4, 4) for _ in range(2)]
for blk in range(2):
    for r in range(4):
        off = 16 * blk + 32 * r
        a(f'ds_read_b32 {AF[blk][r]}, {aF[(off % 48) // 16]} offset:{T2IN + 256 * (off // 48)}')
a(f'ds_read_b32 {NB[0]}, {aN} offset:{T2IN + 341*4}')
a(f'ds_read_b32 {NB[1]}, {aN} offset:{T2IN + 341*4 + 1408}')
Dre = [[V.alloc(4, 4) for b in range(2)] for q in range(2)]; Dim = [[V.alloc(4, 4) for b in range(2)] for q in range(2)]
VV = [[V.alloc(4, 4) for b in range(2)] for q in range(2)]
Y = [[V.alloc(4, 4) for db in range(2)] for q in range(2)]
for blk in range(2):
    for q in range(2):
        a(mf16(Dre[q][blk], AF[blk], B1[q][0], 0)); a(mf16(Dim[q][blk], AF[blk], B1[q][1], 0))
for q in range(2):
    for db in range(2): a(mf16(Y[q][db], AN[q], NB, 0))
for q in range(2):
    for blk in range(2):
        emit(twiddle(Dre[q][blk], Dim[q][blk], T3c[blk], T3s[blk], tre, tim, VV[q][blk], +1))
        for db in range(2): a(mf16(Y[q][db], VV[q][blk], B2[blk][db], Y[q][db]))
    if q == 1:
        for db in range(2): a(f'ds_write_b128 {aYw}, {Y[0][db]} offset:{YROW + 1024*db}')
for db in range(2): a(f'ds_write_b128 {aYw}, {Y[1][db]} offset:{YROW + 2048 + 1024*db}')
stamp('f')
if OPT.get('only') == 'fft': a('s_waitcnt vmcnt(0)')
else: check_retry(aloads, [AU[3], AU[7], AU[11]], vt, vt2)
stamp('f')
V.release(*Dre[0], *Dre[1], *Dim[0], *Dim[1], *VV[0], *VV[1], *AF)
GA = [V.alloc(2, 2) for _ in range(8)]
for s in range(8):
    a(f'v_lshlrev_b32 {GA[s][0]}, 16, {X[s]}'); a(f'v_and_b32 {GA[s][1]}, 0xffff0000, {X[s]}')
a.barrier()
Rr = [V.alloc(2, 2) for _ in range(8)]
for q in (0, 1, 4, 5, 2, 6, 3, 7): a(f'ds_read_b64 {Rr[q]}, {aYr} offset:{YROW + 2048*q}')
for s in range(8): a(f'v_pk_mul_f32 {GA[s]}, {GA[s]}, {sG[2*s:2*s+2]} op_sel_hi:[1,0]')
R0, R4, A1, Bq1, A2, Bq2, A3, Bq3 = Rr
E = [V.alloc(2, 2) for _ in range(4)]; e0 = V.alloc(2, 2); e1 = V.alloc(2, 2)
Oo = [V.alloc(2, 2) for _ in range(4)]
a(f'''
v_pk_add_f32 {e0}, {R0}, {R4}
v_pk_add_f32 {e1}, {R0}, {R4} {NEG1}
v_pk_add_f32 {E[0]}, {e0}, {A2}
v_pk_add_f32 {E[2]}, {e0}, {A2} {NEG1}
v_pk_add_f32 {E[1]}, {e1}, {Bq2}
v_pk_add_f32 {E[3]}, {e1}, {Bq2} {NEG1}
v_pk_add_f32 {Oo[0]}, {A1}, {A3}
v_pk_add_f32 {e0}, {A1}, {A3} {NEG1}
v_pk_add_f32 {Oo[2]}, {Bq1}, {Bq3} {NEG1}
v_pk_add_f32 {e1}, {Bq1}, {Bq3}
''')
yy = Rr
a(f'''
v_pk_add_f32 {yy[0]}, {E[0]}, {Oo[0]}
v_pk_add_f32 {yy[4]}, {E[0]}, {Oo[0]} {NEG1}
v_pk_add_f32 {Oo[1]}, {e1}, {e0}
v_pk_add_f32 {Oo[3]}, {e1}, {e0} {NEG1}
v_pk_add_f32 {yy[2]}, {E[2]}, {Oo[2]}
v_pk_add_f32 {yy[6]}, {E[2]}, {Oo[2]} {NEG1}
v_pk_fma_f32 {yy[1]}, {Oo[1]}, {sH}, {E[1]} op_sel_hi:[1,0,1]
v_pk_fma_f32 {yy[5]}, {Oo[1]}, {sH}, {E[1]} op_sel_hi:[1,0,1] neg_lo:[1,0,0] neg_hi:[1,0,0]
v_pk_fma_f32 {yy[3]}, {Oo[3]}, {sH}, {E[3]} op_sel_hi:[1,0,1]
v_pk_fma_f32 {yy[7]}, {Oo[3]}, {sH}, {E[3]} op_sel_hi:[1,0,1] neg_lo:[1,0,0] neg_hi:[1,0,0]
''')
of = V.alloc(8)
for s in (0, 4, 2, 6, 1, 5, 3, 7):
    a(f'v_pk_fma_f32 {yy[s]}, {yy[s]}, {sG[2*s:2*s+2]}, {GA[s]} op_sel:[0,1,0]')
for s in (0, 4, 2, 6, 1, 5, 3, 7):
    a(f'v_cvt_pk_bf16_f32 {of[s]}, {yy[s][0]}, {yy[s][1]}')
    a(f'buffer_store_dword {of[s]}, {vXo}, {sOut}, {sOff[s] if s else 0} offen')
stamp('f')
a(f'''
s_or_b32 {sT}, s2, {sWave}
s_cmp_lg_u32 {sT}, 0
s_cbranch_scc1 L_fdone
v_mov_b32 {of[0]}, {sTag}
v_mov_b32 {vt}, 0
s_mov_b64 exec, 1
buffer_store_dword {of[0]}, {vt}, {sWS}, 0 offen
s_mov_b64 exec, -1
L_fdone:
''')
if STAMP:
    a('s_waitcnt vmcnt(0)'); stamp('f')
stamp_flush()
a('s_endpgm')
nf = nstamp[0]
vmax = V.hi

a.forget()
nstamp[0] = 0
V = Regs('v', 1, 250)
S2 = Regs('s', 3, 100)
for r in (sWS, sTag, sIdx, sW8, sWave, sT, sT2, sSpin, sPc, sStamp):
    for i in range(r.n): S2.free.discard(r.b + i)
sP = S2.alloc(16, 4); sE = S2.alloc(1); sD = S2.alloc(2); sK = S2.alloc(4); sCh = S2.alloc(1); sHf = S2.alloc(1)
EP_C, EP_R = 28832, 544
UREV, UREV_C = 0, 4224
KC, KC_C = 8448, 3104
EP = 14720
KEO, KEO_C, KEO_O = EP, 9600, 4800
YP, YP_S = EP + 19200, 144
a('L_conv:')
if OPT.get('only') == 'fft': a('s_endpgm')
if STAMP:
    a(f'{CLK} {sStamp}')
    nstamp[0] = 1
a(f's_load_dwordx16 {sP}, s[0:1], 8')
prm = V.alloc(8); vo = V.alloc(1); vo2 = V.alloc(1); vt = V.alloc(1); vt2 = V.alloc(1)
vlane = V.alloc(1); l15 = V.alloc(1); vg = V.alloc(1)
a(f'''
s_lshl_b32 {sT}, {sIdx}, 9
v_lshl_add_u32 {vo}, v0, 1, {sT}
s_lshr_b32 {sCh}, {sWave}, 1
s_and_b32 {sHf}, {sWave}, 1
s_lshl_b32 {sT}, {sIdx}, 1
s_add_u32 {sT}, {sT}, {sCh}
s_lshl_b32 {sT}, {sT}, 1
v_mov_b32 {vo2}, {sT}
v_and_b32 {vlane}, 63, v0
v_and_b32 {l15}, 15, v0
v_bfe_u32 {vg}, v0, 4, 2
s_waitcnt lgkmcnt(0)
global_load_ushort {prm[6]}, {vo2}, {sP[12:14]}
''')
if STAMP: a(f'v_writelane_b32 v255, {sStamp[0]}, 0')
for i in range(6): a(f'global_load_ushort {prm[i]}, {vo}, {sP[2*i:2*i+2]}')
a(f'''
s_load_dword {sE}, {sWS[0:2]}, 0
s_lshl_b32 {sT}, {sIdx}, 2
s_load_dword {sD[0]}, {sP[14:16]}, {sT}
''')
dummy = V.alloc(4)
if opt('pf', 1):
    a(f'v_lshlrev_b32 {vt}, 7, v0')
    a(f'v_min_u32 {vt}, L_codeend-L_pcref-4, {vt}')
    a(f'global_load_dword {dummy[0]}, {vt}, {sPc}')
if opt('tlb', 1):
    holes = []
    for pg in range(6):
        lo, hi = pg << 21, (pg + 1) << 21
        for (b, s, n, used) in ((XT_B, XT_S, 256, 12288), (T1_B, T1_S, 256, 11264), (T2_B, T2_S, 176, 16384), (AT_B, AT_S, 256, 12288)):
            c = [b + i * s + used for i in range(n) if lo <= b + i * s + used < hi]
            if c: holes.append(c[0]); break
    assert len(holes) == 6
    a(f'v_mov_b32 {vt2}, {holes[0]}')
    for i in range(1, 6): a(f'v_writelane_b32 {vt2}, {sT}, {i}' if False else f's_mov_b32 {sT}, {holes[i]}\nv_writelane_b32 {vt2}, {sT}, {i}')
    a(f'buffer_load_dword {dummy[1]}, {vt2}, {sWS}, 0 offen')
stamp('c')
aEP = V.alloc(1); aE = V.alloc(1); aPm = V.alloc(1); aK0 = V.alloc(1); aK1 = V.alloc(1); aK2 = V.alloc(1)
aX = V.alloc(9); aKw = V.alloc(1); aUw = V.alloc(1); aXg = V.alloc(1); aSt = V.alloc(1)
aB = V.alloc(8); aB0 = V.alloc(4); aAf = V.alloc(1); aYw = V.alloc(1); aYr = V.alloc(1)
zero = V.alloc(4, 4)
a(f'''
s_mul_i32 {sT}, {sCh}, {EP_C}
s_add_u32 {sT}, {sT}, {EP}
v_and_b32 {vt}, 127, v0
v_lshl_add_u32 {aEP}, {vt}, 2, {sT}
v_mul_u32_u24 {vt}, {EP_R}, {l15}
v_lshl_add_u32 {vt}, {vg}, 4, {vt}
v_add_u32 {aPm}, {sT}, {vt}
s_mul_i32 {sT2}, {sHf}, {16*EP_R}
v_add_u32 {aE}, {sT2}, {aPm}
s_lshl_b32 {sT}, {sHf}, 4
v_add_u32 {vo}, {sT}, {l15}
s_mul_i32 {sT}, {sCh}, {KC_C}
s_add_u32 {sT}, {sT}, {KC + 16}
v_lshlrev_b32 {vt}, 3, {vo}
v_lshl_add_u32 {vt}, {vg}, 2, {vt}
v_lshlrev_b32 {vt2}, 2, {vo}
v_add_u32 {vt2}, 256, {vt2}
v_cmp_eq_u32 vcc, 2, {vg}
v_lshlrev_b32 {aK1}, 1, {vo}
v_add_u32 {aK1}, 384, {aK1}
v_cndmask_b32 {vt}, {vt}, {vt2}, vcc
v_cmp_eq_u32 vcc, 3, {vg}
v_mov_b32 {vt2}, 2
v_lshl_add_u32 {aK2}, {vg}, 7, {vo}
v_cndmask_b32 {vt}, {vt}, {aK1}, vcc
v_cndmask_b32 {vt2}, {vt2}, 64, vcc
v_lshl_add_u32 {aK0}, {vt}, 2, {sT}
v_lshl_add_u32 {aK1}, {vt2}, 2, {aK0}
v_add_u32 {aK2}, 512, {aK2}
v_lshl_add_u32 {aK2}, {aK2}, 2, {sT}
v_lshlrev_b32 {vt}, 3, v0
v_lshlrev_b32 {vt2}, 2, v0
v_add_u32 {vt2}, 128, {vt2}
v_min_u32 {vt}, {vt}, {vt2}
v_lshlrev_b32 {vt2}, 1, v0
v_add_u32 {vt2}, 256, {vt2}
v_min_u32 {vt}, {vt}, {vt2}
v_add_u32 {vt2}, 384, v0
v_min_u32 {vt}, {vt}, {vt2}
v_lshlrev_b32 {vt}, 2, {vt}
v_add_u32 {vt}, {KC + 16}, {vt}
v_and_b32 {vt2}, 1, v0
v_lshlrev_b32 {vt2}, 16, {vt2}
v_or_b32 {vt2}, 0x11100000, {vt2}
v_mov_b32 {vo}, 0x22111000
v_cmp_gt_u32 vcc, 128, v0
v_mov_b32 {vo2}, 0x43222100
s_nop 0
v_cndmask_b32 {vt2}, {vt2}, {vo}, vcc
v_cmp_gt_u32 vcc, 64, v0
v_mov_b32 {vo}, 0x76543210
s_nop 0
v_cndmask_b32 {vt2}, {vt2}, {vo2}, vcc
v_cmp_gt_u32 vcc, 32, v0
s_nop 1
v_cndmask_b32 {vt2}, {vt2}, {vo}, vcc
v_cmp_gt_u32 vcc, 33, v0
v_add_u32 {vo}, -4, {vt}
''')
for e in range(8):
    a(f'v_bfe_u32 {aX[e+1]}, {vt2}, {4*e}, 4'); a(f'v_lshl_add_u32 {aX[e+1]}, {aX[e+1]}, 2, {vt}')
a(f'''
v_cndmask_b32 {aX[0]}, {vt}, {vo}, vcc
v_lshrrev_b32 {vt}, 3, v0
v_mul_u32_u24 {aKw}, 144, {vt}
v_and_b32 {vt2}, 7, v0
v_lshl_add_u32 {aKw}, {vt2}, 4, {aKw}
v_lshlrev_b32 {aUw}, 4, {vt}
v_sub_u32 {vt2}, 7, {vt2}
v_lshl_add_u32 {aUw}, {vt2}, 1, {aUw}
v_mul_u32_u24 {aXg}, {XT_S}, v0
v_lshlrev_b32 {aSt}, 4, v0
s_lshl_b32 {sK[0]}, {sIdx}, 4
s_add_u32 {sK[0]}, {sK[0]}, {XT_B}
s_add_u32 {sK[1]}, {sK[0]}, 4096
s_add_u32 {sK[2]}, {sK[0]}, 8192
v_and_b32 {vt}, 3, v0
v_bfe_u32 {vt2}, v0, 4, 1
v_lshl_add_u32 {vt}, {vt2}, 2, {vt}
v_bfe_u32 {vo}, v0, 2, 2
v_bfe_u32 {vo2}, v0, 5, 1
v_lshrrev_b32 {aAf}, 1, {vt}
v_lshl_add_u32 {aAf}, {vo2}, 2, {aAf}
v_add_u32 {aAf}, -3, {aAf}
v_and_b32 {vt2}, 1, {vt}
v_sub_u32 {vt2}, 1, {vt2}
v_mul_u32_u24 {vt2}, {KEO_O}, {vt2}
v_mul_u32_u24 {aYw}, 144, {vo}
s_mul_i32 {sT}, {sCh}, {KEO_C}
s_add_u32 {sT}, {sT}, {KEO + 144}
v_add3_u32 {vt2}, {vt2}, {aYw}, {sT}
v_lshl_add_u32 {aB[0]}, {aAf}, 2, {vt2}
''')
for b in range(1, 8): a(f'v_add_u32 {aB[b]}, {576*b}, {aB[0]}')
for j in range(4):
    a(f'v_add_u32 {aYr}, {j}, {aAf}')
    a(f'v_ashrrev_i32 {aYw}, 31, {aYr}')
    a(f'v_lshl_add_u32 {aYr}, {aYw}, 2, {aYr}')
    a(f'v_lshl_add_u32 {aB0[j]}, {aYr}, 2, {vt2}')
a(f'''
v_and_b32 {aAf}, 31, v0
v_sub_u32 {aAf}, {aAf}, {vo2}
s_mul_i32 {sT}, {sCh}, {UREV_C}
s_add_u32 {sT}, {sT}, {UREV + 32}
v_lshl_add_u32 {aAf}, {aAf}, 4, {sT}
v_lshl_add_u32 {vt}, {vo}, 6, {vt}
v_lshl_add_u32 {vt}, {vo2}, 5, {vt}
v_mul_u32_u24 {aYw}, {YP_S}, {vt}
s_lshl_b32 {sT}, {sWave}, 5
v_add_u32 {aYw}, {sT}, {aYw}
v_mul_u32_u24 {aYr}, {YP_S}, v0
v_mov_b32 {zero[0]}, 0
v_mov_b32 {zero[1]}, 0
v_mov_b32 {zero[2]}, 0
v_mov_b32 {zero[3]}, 0
v_and_b32 {vt}, 7, v0
v_lshlrev_b32 {vt}, 4, {vt}
ds_write_b128 {vt}, {zero} offset:{UREV}
ds_write_b128 {vt}, {zero} offset:{UREV + UREV_C}
ds_write_b128 {zero[0]}, {zero} offset:{KC}
ds_write_b128 {zero[0]}, {zero} offset:{KC + KC_C}
''')
stamp('c')
L2E = 1 / math.log(2); L2Eh = struct.unpack('<f', struct.pack('<f', L2E))[0]; L2El = L2E - L2Eh
dt = V.alloc(1); lm = V.alloc(1); rvv = V.alloc(1); tA = V.alloc(4); tB = V.alloc(4)
z = V.alloc(2, 2); w = V.alloc(2, 2); q = V.alloc(2, 2); cB = V.alloc(2, 2); cC = V.alloc(2, 2)
a(f'''
v_lshlrev_b32 {dt}, 16, {prm[6]}
v_mul_f32 {tA[0]}, {f2u(L2Eh)}, {dt}
s_mov_b32 {sT}, {f2u(L2Eh)}
v_fma_f32 {tA[1]}, {dt}, {sT}, -{tA[0]}
v_exp_f32 {tA[0]}, {tA[0]}
v_fmamk_f32 {tA[1]}, {dt}, {f2u(L2El)}, {tA[1]}
v_mul_f32 {tA[1]}, {f2u(math.log(2))}, {tA[1]}
v_fma_f32 {dt}, {tA[0]}, {tA[1]}, {tA[0]}
v_cvt_pk_bf16_f32 {dt}, {dt}, {dt}
v_and_b32 {dt}, 0xffff0000, {dt}
v_lshlrev_b32 {lm}, 16, {prm[0]}
v_lshlrev_b32 {rvv}, 16, {prm[1]}
v_lshlrev_b32 {cB[0]}, 16, {prm[2]}
v_lshlrev_b32 {cB[1]}, 16, {prm[3]}
v_lshlrev_b32 {cC[0]}, 16, {prm[4]}
v_lshlrev_b32 {cC[1]}, 16, {prm[5]}
v_mul_f32 {lm}, {dt}, {lm}
v_mul_f32 {rvv}, {dt}, {rvv}
v_mul_f32 {cB[0]}, {dt}, {cB[0]}
v_mul_f32 {cB[1]}, {dt}, {cB[1]}
v_mul_f32 {lm}, {f2u(L2Eh)}, {lm}
v_mul_f32 {rvv}, 0.15915494, {rvv}
''')
for i, (d, m) in enumerate(((w, 8.0), (z, 1.0), (q, 256.0))):
    a(f'v_mul_f32 {tA[i]}, {f2u(m)}, {lm}'); a(f'v_mul_f32 {tB[i]}, {f2u(m)}, {rvv}')
for i in range(3):
    a(f'v_exp_f32 {tA[i]}, {tA[i]}'); a(f'v_fract_f32 {tB[i]}, {tB[i]}')
for i, d in enumerate((w, z, q)):
    a(f'v_cos_f32 {d[0]}, {tB[i]}'); a(f'v_sin_f32 {d[1]}, {tB[i]}')
for i, d in enumerate((w, z, q)):
    a(f'v_mul_f32 {d[0]}, {tA[i]}, {d[0]}'); a(f'v_mul_f32 {d[1]}, {tA[i]}, {d[1]}')
ob = V.alloc(14); obi = [0]; obc = [6]
def put(row, val, neg):
    o = ob[2*obc[0] + obi[0] % 2]; obi[0] += 1
    return [f'v_cvt_pk_bf16_f32 {o}, {val[0]}, {"-" if neg else ""}{val[1]}', f'ds_write_b32 {aEP}, {o} offset:{row*EP_R}']
Ec = [[V.alloc(2, 2) for _ in range(2)] for _ in range(4)]
E4 = V.alloc(2, 2)
Pz = [V.alloc(2, 2) for _ in range(8)]; Pq = [V.alloc(2, 2) for _ in range(2)]; Px = [V.alloc(2, 2) for _ in range(3)]
chains = []
head = []
head += [f'v_mov_b32 {ob[0]}, 0x3f80', f'ds_write_b32 {aEP}, {ob[0]} offset:0']
head += cmul(Ec[2][0], w, w) + cmul(Pz[0], cC, cB)
head += put(1, w, 0)
head += cmul(Ec[3][0], Ec[2][0], w) + cmul(E4, Ec[2][0], Ec[2][0])
head += put(2, Ec[2][0], 0) + put(32, Pz[0], 1)
emit(head)
for ch in range(4):
    steps = []; obc[0] = ch
    first = {1: w, 2: Ec[2][0], 3: Ec[3][0], 0: E4}[ch]
    cur = first; idx = ch if ch else 4
    if ch == 3: steps.append(put(3, cur, 0))
    if ch == 0: steps.append(put(4, cur, 0))
    pp = 1
    while idx + 4 < 32:
        nxt = Ec[ch][pp]; pp ^= 1
        steps.append(cmul(nxt, cur, E4)); idx += 4
        steps.append(put(idx, nxt, 0)); cur = nxt
    chains.append(steps)
st = []; obc[0] = 4
for i in range(1, 8):
    st.append(cmul(Pz[i], Pz[i-1], z)); st.append(put(32 + i, Pz[i], 1))
for i, (src, row) in enumerate(((2, 9), (4, 10), (6, 11))):
    st.append(cmul(Px[i], Pz[src], q)); st.append(put(32 + row, Px[i], 1))
st.append(cmul(Px[0], Px[1], q)); st.append(put(32 + 13, Px[0], 1))
st.append(cmul(Px[2], Px[0], q)); st.append(put(32 + 15, Px[2], 1))
chains.append(st)
st = []; cur = Pz[0]; obc[0] = 5
for i, row in enumerate((8, 12, 14, 16, 17, 18, 19, 20)):
    nxt = Pq[i & 1]
    st.append(cmul(nxt, cur, q)); st.append(put(32 + row, nxt, 1)); cur = nxt
chains.append(st)
pos = [[0, 0] for _ in chains]
live = True
while live:
    live = False
    for ci, ch in enumerate(chains):
        si, ii = pos[ci]
        reps = 2 if ci == 4 else 1
        for _ in range(reps):
            si, ii = pos[ci]
            if si >= len(ch): continue
            live = True
            a(ch[si][ii]); ii += 1
            if ii == len(ch[si]): si += 1; ii = 0
            pos[ci] = [si, ii]
a(f'''
s_mul_i32 {sTag}, {sE}, 0x9E3779B1
s_add_u32 {sTag}, {sTag}, 0x7F4A7C15
s_lshr_b32 {sD[1]}, {sD[0]}, 16
s_lshl_b32 {sD[1]}, {sD[1]}, 16
s_and_b32 {sD[0]}, {sD[0]}, 0xffff
''')
a.barrier()
stamp('c')
V.release(*[x for p in Ec for x in p], E4, *Pz, *Pq, *Px, ob, z, w, q, cB, cC, tA, tB, dt, lm, rvv, prm)
XU = V.alloc(12, 4); X = [XU[s + s // 3] for s in range(8)]
xloads = [f'buffer_load_dwordx4 {XU[4*u:4*u+4]}, {aXg}, {sWS}, {sK[u]} offen sc1' for u in range(3)]
FB = [V.alloc(4, 4) for _ in range(8)]; FA = [[V.alloc(4, 4) for _ in range(8)] for _ in range(2)]
K0 = V.alloc(4, 4); K1 = V.alloc(4, 4)
for k in range(8):
    a(f'ds_read_b128 {FB[k]}, {aE} offset:{64*k}')
    a(f'ds_read_b128 {FA[0][k]}, {aPm} offset:{32*EP_R + 64*k}')
    a(f'ds_read_b128 {FA[1][k]}, {aPm} offset:{48*EP_R + 64*k}')
for k in range(8):
    a(mf16(K0, FA[0][k], FB[k], K0 if k else 0)); a(mf16(K1, FA[1][k], FB[k], K1 if k else 0))
emit(xloads)
a(f'ds_write_b64 {aK0}, {K0[0:2]}'); a(f'ds_write_b64 {aK1}, {K0[2:4]}')
a('s_mov_b32 exec_hi, 0')
for r in range(4): a(f'ds_write_b32 {aK2}, {K1[r]} offset:{128*r}')
a('s_mov_b64 exec, -1')
a.barrier()
V.release(*FB, *FA[0], *FA[1], K0, K1)
kv = [V.alloc(9) for _ in range(2)]; kE = [V.alloc(4, 4) for _ in range(2)]; kO = [V.alloc(4, 4) for _ in range(2)]
for c in range(2):
    for e in range(9): a(f'ds_read_b32 {kv[c][e]}, {aX[e]} offset:{KC_C*c}')
for c in range(2):
    for o in range(2): a(f'ds_write_b128 {zero[0]}, {zero} offset:{KEO + KEO_C*c + KEO_O*o + 112}')
for c in range(2):
    for i in range(4):
        a(f'v_cvt_pk_bf16_f32 {kE[c][i]}, {kv[c][2*i+1]}, {kv[c][2*i+2]}')
        a(f'v_cvt_pk_bf16_f32 {kO[c][i]}, {kv[c][2*i]}, {kv[c][2*i+1]}')
    a(f'ds_write_b128 {aKw}, {kE[c]} offset:{KEO + KEO_C*c + 144}')
    a(f'ds_write_b128 {aKw}, {kO[c]} offset:{KEO + KEO_C*c + KEO_O + 144}')
stamp('c')
check_retry(xloads, [XU[3], XU[7], XU[11]], vt, vt2)
stamp('c')
for s in range(8):
    a(f'ds_write_b16 {aUw}, {X[s]} offset:{UREV + 128 + 512*s}')
    a(f'ds_write_b16_d16_hi {aUw}, {X[s]} offset:{UREV + UREV_C + 128 + 512*s}')
a.barrier()
V.release(*kv, *kE, *kO, aEP, aE, aPm, aK0, aK1, aK2, aX, aKw, aUw, zero, vo, vo2, l15, vg, vlane)
stamp('c')

ACC = [V.alloc(16, 4) for _ in range(4)]
FAb = [V.alloc(32, 4) for _ in range(2)]; FBb = [V.alloc(32, 4) for _ in range(2)]
FA = [[FAb[p][4*i:4*i+4] for i in range(8)] for p in range(2)]; FB = [[FBb[p][4*i:4*i+4] for i in range(8)] for p in range(2)]
EM = [FAb[0][8*i:8*i+6] for i in range(4)]
def reads(kp, nmax):
    o = []
    for b in range(nmax + 1):
        o.append(f'ds_read_b128 {FA[kp&1][b]}, {aAf} offset:{512*b + (6 - 2*kp)*16 - 0}')
        if kp == 0:
            for j in range(4): o.append(f'ds_read_b32 {FB[0][b][j]}, {aB0[j]} offset:{576*b}')
        else:
            o.append(f'ds_read2_b32 {FB[kp&1][b][0:2]}, {aB[b]} offset0:{8*kp} offset1:{8*kp+1}')
            o.append(f'ds_read2_b32 {FB[kp&1][b][2:4]}, {aB[b]} offset0:{8*kp+2} offset1:{8*kp+3}')
    return o
DP = 'row_mask:0xf bank_mask:0xf bound_ctrl:1'
def lower(acc, slot, onto=False):
    o = []
    for i in range(4):
        d = EM[i][slot]
        if onto: o.append(f'v_add_f32 {d}, {acc[i]}, {d}'); o.append(f'v_add_f32_dpp {d}, {acc[4+i]}, {d} row_shr:4 {DP}')
        else: o.append(f'v_add_f32_dpp {d}, {acc[4+i]}, {acc[i]} row_shr:4 {DP}')
    for i in range(4): o.append(f'v_add_f32_dpp {EM[i][slot]}, {acc[8+i]}, {EM[i][slot]} row_shr:8 {DP}')
    for i in range(4): o.append(f'v_add_f32_dpp {EM[i][slot]}, {acc[12+i]}, {EM[i][slot]} row_shr:12 {DP}')
    return o
def upper(acc, slot):
    o = []
    for i in range(4): o.append(f'v_mov_b32_dpp {EM[i][slot]}, {acc[12+i]} row_shl:4 {DP}')
    for i in range(4): o.append(f'v_add_f32_dpp {EM[i][slot]}, {acc[8+i]}, {EM[i][slot]} row_shl:8 {DP}')
    for i in range(4): o.append(f'v_add_f32_dpp {EM[i][slot]}, {acc[4+i]}, {EM[i][slot]} row_shl:12 {DP}')
    return o
def conv_variant(taus, plan):
    nmax = max(taus)
    emit(reads(0, nmax))
    if opt('cvtest') == 4:
        n0 = nstamp[0]; stamp('c')
        if taus[0] == 0: nstamp[0] = n0
    for kp in range(4):
        if kp == 0:
            order = sorted([(ti, b) for ti, t in enumerate(taus) for b in range(t + 1)], key=lambda x: max(x[1], taus[x[0]] - x[1]))
        else:
            order = [(ti, b) for ti, t in enumerate(taus) for b in range(t + 1)]
        fill = reads(kp + 1, nmax) if kp < 3 else []
        if opt('cvtest') == 1: fill = []
        if opt('cvtest') == 2: fill = [x for x in fill if 'b128' in x]
        if opt('cvtest') == 3: fill = [x for x in fill if 'b128' not in x]
        seen = set(); pend = []
        for n, (ti, b) in enumerate(order):
            first = kp == 0 and ti not in seen; seen.add(ti)
            a(mf32(ACC[ti], FA[kp&1][taus[ti] - b], FB[kp&1][b], 0 if first else ACC[ti]))
            if kp < 3:
                k = -(-len(fill) // (len(order) - n)) if n >= 1 else 0
                for _ in range(k): a(fill.pop(0))
            else:
                if b == 1 and ti > 0: pend += plan[ti - 1]
                if b == 0 and ti > 0 and taus[ti] == 0: pend += plan[ti - 1]
                for _ in range(min(6, len(pend))): a(pend.pop(0))
        emit(pend)
    emit(plan[len(taus) - 1])
    for i in range(4):
        a(f'ds_write_b128 {aYw}, {EM[i][0:4]} offset:{YP + 8*YP_S*i}')
        a(f'ds_write_b64 {aYw}, {EM[i][4:6]} offset:{YP + 8*YP_S*i + 16}')
a(f's_cmp_eq_u32 {sHf}, 1'); a('s_cbranch_scc1 L_cvb')
conv_variant((0, 3, 4, 7), [lower(ACC[0], 0) + upper(ACC[0], 1), lower(ACC[1], 2) + upper(ACC[1], 3), lower(ACC[2], 3, True) + upper(ACC[2], 4), lower(ACC[3], 5)])
a('s_waitcnt lgkmcnt(0)'); a('s_branch L_cvj'); a('L_cvb:')
conv_variant((1, 2, 5, 6), [lower(ACC[0], 0) + upper(ACC[0], 1), lower(ACC[1], 1, True) + upper(ACC[1], 2), lower(ACC[2], 3) + upper(ACC[2], 4), lower(ACC[3], 4, True) + upper(ACC[3], 5)])
a('s_waitcnt lgkmcnt(0)'); a('L_cvj:')
a('s_barrier')
stamp('c')
V.release(*ACC, *FAb, *FBb)
YV = [V.alloc(6, 2) for _ in range(4)]
for i in range(4):
    a(f'ds_read_b128 {YV[i][0:4]}, {aYr} offset:{YP + 32*i}'); a(f'ds_read_b64 {YV[i][4:6]}, {aYr} offset:{YP + 32*i + 16}')
a(f'''
s_mul_i32 {sT}, {sIdx}, {AT_S}
s_add_u32 {sK[0]}, {sT}, {AT_B}
s_add_u32 {sK[1]}, {sK[0]}, 4096
s_add_u32 {sK[2]}, {sK[0]}, 8192
''')
OU = V.alloc(12, 4)
for u in range(3): a(f'v_mov_b32 {OU[4*u+3]}, {sTag}')
a(f'v_mov_b32 {OU[10]}, 0')
yv = []
for c in range(2):
    A, B = YV[2*c], YV[2*c+1]
    a(f'v_add_f32 {B[0]}, {B[0]}, {A[1]}'); a(f'v_add_f32 {A[2]}, {A[2]}, {B[2]}')
    a(f'v_add_f32 {B[3]}, {B[3]}, {A[4]}'); a(f'v_add_f32 {A[5]}, {A[5]}, {B[5]}')
    yv.append([A[0], B[0], B[1], A[2], A[3], B[3], B[4], A[5]])
for c in range(2):
    for s in range(8): a(f'v_dot2_f32_bf16 {yv[c][s]}, {X[s]}, {sD[c]}, {yv[c][s]}')
for s in range(8): a(f'v_cvt_pk_bf16_f32 {OU[s + s//3]}, {yv[0][s]}, {yv[1][s]}')
for u in range(3): a(f'buffer_store_dwordx4 {OU[4*u:4*u+4]}, {aSt}, {sWS}, {sK[u]} offen sc1')
if STAMP:
    stamp('c'); a('s_waitcnt vmcnt(0)'); stamp('c')
stamp_flush()
a('L_end:')
a('s_endpgm')
a('L_codeend:')
vmax = max(vmax, V.hi)
smax = max(S.hi, S2.hi)

hdr = open('gated_mix__ssm_conv_s4__spectral_gfnet__prompt.s.ref').read().split('; Override launch')[0]
nv = 256
src = hdr + f'''; @launch grid=(512,1,1) block=(256,1,1) lds={LDS_BYTES}
; stampinfo ({nf}, {nstamp[0]}, {list(range(p2start, p2end))})
; Generated by dev/gen.py. One launch, 512 workgroups: ids 0..255 run the 2-D FFT filter path (three phases joined by
; tagged 16-byte hand-off units in d_ws), ids 256..511 build the S4 kernel and run the causal convolution on MFMA.
.amdgcn_target "amdgcn-amd-amdhsa--gfx950"
.text
.globl {KNAME}
.p2align 8
.type {KNAME},@function
{KNAME}:
''' + a.text() + f'''.section .rodata,"a"
.p2align 6
.amdhsa_kernel {KNAME}
  .amdhsa_next_free_vgpr {nv}
  .amdhsa_next_free_sgpr {max(smax, 16)}
  .amdhsa_accum_offset {nv}
  .amdhsa_group_segment_fixed_size 0
  .amdhsa_kernarg_size 128
  .amdhsa_user_sgpr_count 2
  .amdhsa_user_sgpr_kernarg_segment_ptr 1
  .amdhsa_system_sgpr_workgroup_id_x 1
.end_amdhsa_kernel
'''
open(sys.argv[1], 'w').write(src)
print('vgpr hi', vmax, 'sgpr hi', smax, 'nops', a.nnop, 'lines', len(a.out))
```

```python
import sys, struct, math
from asmlib import Asm, Regs, R

KNAME = 'gated_mix__ssm_conv_s4__spectral_gfnet__prompt_kernel'
OPT = dict(a.split('=') for a in sys.argv[2:] if '=' in a)
def opt(k, d=0): return int(OPT.get(k, d))
STAMP = opt('stamp')

def f2u(x): return '0x%08x' % struct.unpack('<I', struct.pack('<f', x))[0]

XT_B, XT_S = 0x001000, 12416
T1_B, T1_S = 0x310000, 11392
T2_B, T2_S = 0x5E0000, 16512
AT_B, AT_S = 0x8B0000, 12416
WS_USED = 0xC00000
ST_B = 0xB00000 + 0xC0000
SPIN = 20000
LDS_BYTES = 78400

a = Asm()
S = Regs('s', 3, 100)
sWS = S.alloc(4); sTag = S.alloc(1); sIdx = S.alloc(1); sW8 = S.alloc(1); sWave = S.alloc(1)
sT = S.alloc(1); sT2 = S.alloc(1); sSpin = S.alloc(1)
sPc = S.alloc(2)
sStamp = S.alloc(2)
nstamp = [0]
CLK = 's_memtime' if STAMP == 2 else 's_memrealtime'

def stamp(role, V=None):
    if not STAMP: return
    n = nstamp[0]; nstamp[0] += 1
    a(f'{CLK} {sStamp}')
    a('s_waitcnt lgkmcnt(0)')
    a(f'v_writelane_b32 v255, {sStamp[0]}, {n}')

def stamp_flush():
    if not STAMP: return
    a(f'''
    s_lshl_b32 {sT}, s2, 2
    s_add_u32 {sT}, {sT}, {sWave}
    s_lshl_b32 {sT}, {sT}, 6
    s_add_u32 {sT}, {sT}, {ST_B}
    v_and_b32 v254, 63, v0
    v_lshlrev_b32 v254, 2, v254
    s_mov_b64 exec, 0xffff
    buffer_store_dword v255, v254, {sWS}, {sT} offen
    s_mov_b64 exec, -1
    ''')

def DELAY(where):
    if opt('delay') != where: return ''
    where = newlab('d')
    return f's_mov_b32 s99, 0\nL_dly{where}:\n' + 's_nop 0\n' * 29 + f's_add_u32 s99, s99, 1\ns_cmp_lt_u32 s99, 128\ns_cbranch_scc1 L_dly{where}'
lab = [0]
def newlab(p):
    lab[0] += 1
    return f'L_{p}{lab[0]}'

def check_retry(loads, tags, vt, vt2):
    L, D = newlab('chk'), newlab('got')
    a(f's_mov_b32 {sSpin}, 0')
    a(f'{L}:')
    a('s_waitcnt vmcnt(0)')
    a(f'v_xor_b32 {vt}, {sTag}, {tags[0]}')
    a(f'v_xor_b32 {vt2}, {sTag}, {tags[1]}')
    if len(tags) == 3:
        a(f'v_xor_b32 {tags[2]}, {sTag}, {tags[2]}')
        a(f'v_or3_b32 {vt}, {vt}, {vt2}, {tags[2]}')
    else:
        a(f'v_xor_b32 {tags[2]}, {sTag}, {tags[2]}')
        a(f'v_xor_b32 {tags[3]}, {sTag}, {tags[3]}')
        a(f'v_or3_b32 {vt}, {vt}, {vt2}, {tags[2]}')
        a(f'v_or_b32 {vt}, {vt}, {tags[3]}')
    a(f'v_cmpx_ne_u32 vcc, 0, {vt}')
    a(f's_cbranch_execz {D}')
    for l in loads: a(l)
    a(f's_add_u32 {sSpin}, {sSpin}, 1')
    a(f's_cmp_lt_u32 {sSpin}, {SPIN}')
    a(f's_cbranch_scc1 {L}')
    a('s_waitcnt vmcnt(0)')
    a(f'{D}:')
    a('s_mov_b64 exec, -1')
    a.forget_vm()

Asm.forget_vm = lambda self: setattr(self, 'vm', [])

def cmul(d, p, z):
    return [f'v_pk_mul_f32 {d}, {p}, {z} op_sel_hi:[0,1]',
            f'v_pk_fma_f32 {d}, {p}, {z}, {d} op_sel:[1,1,0] op_sel_hi:[1,0,1] neg_lo:[1,0,0]']

def twiddle(re, im, C, Sn, tre, tim, out, sign):
    o = []
    for h in (0, 2):
        s = slice(h, h + 2)
        o.append(f'v_pk_mul_f32 {tre[s]}, {re[s]}, {C[s]}')
        o.append(f'v_pk_mul_f32 {tim[s]}, {im[s]}, {C[s]}')
    for h in (0, 2):
        s = slice(h, h + 2)
        n1 = 'neg_lo:[1,0,0] neg_hi:[1,0,0]' if sign > 0 else ''
        n2 = '' if sign > 0 else 'neg_lo:[1,0,0] neg_hi:[1,0,0]'
        o.append(f'v_pk_fma_f32 {tre[s]}, {im[s]}, {Sn[s]}, {tre[s]} {n1}')
        o.append(f'v_pk_fma_f32 {tim[s]}, {re[s]}, {Sn[s]}, {tim[s]} {n2}')
    for r in range(4):
        o.append(f'v_cvt_pk_bf16_f32 {out[r]}, {tre[r]}, {tim[r]}')
    return o

def emit(lst):
    for x in lst: a(x)

def mf16(d, A, B, c): return f'v_mfma_f32_16x16x32_bf16 {d}, {A}, {B}, {c}'
def mf32(d, A, B, c): return f'v_mfma_f32_32x32x16_bf16 {d}, {A}, {B}, {c}'

a(f'''
s_cmp_ge_u32 s2, 512
s_cbranch_scc1 L_end
{DELAY(1)}
s_load_dwordx2 {sWS[0:2]}, s[0:1], 120
s_getpc_b64 {sPc}
L_pcref:
s_mov_b32 {sWS[2]}, {WS_USED if not STAMP else 0x1000000}
s_mov_b32 {sWS[3]}, 0x20000
s_and_b32 {sW8}, s2, 7
s_bfe_u32 {sT}, s2, 0x50003
s_lshl_b32 {sIdx}, {sW8}, 5
s_add_u32 {sIdx}, {sIdx}, {sT}
v_lshrrev_b32 v1, 6, v0
s_cmp_ge_u32 s2, 256
v_readfirstlane_b32 {sWave}, v1
s_cbranch_scc1 L_conv
''')

V = Regs('v', 1, 250)
sX = S.alloc(4); sWr = S.alloc(4); sWi = S.alloc(4); sOut = S.alloc(4); sGw = S.alloc(2)
sOff = S.alloc(8)
sGrp = S.alloc(1); sP1 = S.alloc(1); sE = S.alloc(1); sM = S.alloc(1); sH = S.alloc(2); sG = S.alloc(16)
sK = S.alloc(4)
ROWS, T1IMG, WIMG, GPART, GIN, T2IMG, T2IN, YROW = 0, 8192, 20480, 36864, 0, 20480, 0, 20480
GIN_S = 3104

if STAMP:
    a(f'{CLK} {sStamp}')
    nstamp[0] = 1
a(f'''
s_setprio 3
s_load_dwordx2 {sX[0:2]}, s[0:1], 0
s_load_dwordx2 {sWr[0:2]}, s[0:1], 80
s_load_dwordx2 {sWi[0:2]}, s[0:1], 88
s_load_dwordx2 {sGw}, s[0:1], 96
s_load_dwordx2 {sOut[0:2]}, s[0:1], 104
s_mov_b32 {sX[2]}, 0x200000
s_mov_b32 {sX[3]}, 0x20000
s_mov_b32 {sOut[2]}, 0x200000
s_mov_b32 {sOut[3]}, 0x20000
s_mov_b32 {sWr[2]}, 1052672
s_mov_b32 {sWr[3]}, 0x20000
s_mov_b32 {sWi[2]}, 1052672
s_mov_b32 {sWi[3]}, 0x20000
''')
for i in range(1, 8): a(f's_mov_b32 {sOff[i]}, {i*262144}')
XU = V.alloc(12, 4); X = [XU[s + s // 3] for s in range(8)]
GW = V.alloc(1); vT4 = V.alloc(1); vXo = V.alloc(1)
WR = V.alloc(8, 4); WI = V.alloc(8, 4); vWo = V.alloc(1)
l15 = V.alloc(1); vg = V.alloc(1); vlane = V.alloc(1)
a(f'''
s_lshl_b32 {sT}, {sIdx}, 10
v_lshlrev_b32 {vT4}, 2, v0
v_add_u32 {vXo}, {sT}, {vT4}
s_lshr_b32 {sGrp}, s2, 3
s_lshr_b32 {sP1}, {sW8}, 1
s_sub_u32 {sT}, 0, {sP1}
s_cmp_eq_u32 {sW8}, 1
s_cselect_b32 {sT}, 4, {sT}
s_bitcmp1_b32 {sW8}, 0
s_cselect_b32 {sP1}, {sT}, {sP1}
v_lshlrev_b32 {vWo}, 3, v0
v_add_u32 {vWo}, {sP1}, {vWo}
v_and_b32 {vWo}, 2047, {vWo}
v_mul_u32_u24 {vWo}, 514, {vWo}
s_mul_i32 {sT}, {sGrp}, 24
s_cmp_ge_u32 {sGrp}, 22
s_cmov_b32 {sT}, 0x40000000
v_add_u32 {vWo}, {sT}, {vWo}
v_and_b32 {vWo}, -4, {vWo}
v_and_b32 {vlane}, 63, v0
v_and_b32 {l15}, 15, v0
v_bfe_u32 {vg}, v0, 4, 2
s_waitcnt lgkmcnt(0)
''')
if STAMP: a(f'v_writelane_b32 v255, {sStamp[0]}, 0')
for s1 in range(8):
    a(f'buffer_load_dword {X[s1]}, {vXo}, {sX}, {sOff[s1] if s1 else 0} offen')
a(f's_load_dword {sE}, {sWS[0:2]}, 0')
a(f'global_load_dword {GW}, {vT4}, {sGw}')
a(f'''
buffer_load_dwordx4 {WR[0:4]}, {vWo}, {sWr}, 0 offen
buffer_load_dwordx3 {WR[4:7]}, {vWo}, {sWr}, 0 offen offset:16
buffer_load_dwordx4 {WI[0:4]}, {vWo}, {sWi}, 0 offen
buffer_load_dwordx3 {WI[4:7]}, {vWo}, {sWi}, 0 offen offset:16
''')
stamp('f')

a(DELAY(3))
fl = V.alloc(1); fg = V.alloc(1); f1 = V.alloc(1); fb = V.alloc(1)
tc = V.alloc(8, 2); ts = V.alloc(8, 2); rv = V.alloc(8, 2)
B1re = [V.alloc(4, 4) for _ in range(2)]; B1im = [V.alloc(4, 4) for _ in range(2)]
TWc = [V.alloc(4, 2) for _ in range(2)]; TWs = [V.alloc(4, 2) for _ in range(2)]
M1 = V.alloc(4, 4); M2 = V.alloc(4, 4); M3 = V.alloc(4, 4); M4 = V.alloc(4, 4); MN1 = V.alloc(4, 4); MN2 = V.alloc(4, 4)
aTk = [[V.alloc(1) for j in range(2)] for cb in range(2)]; aNy = V.alloc(1); aTr = V.alloc(1); aRd = V.alloc(1)
vSt = V.alloc(1); vSt3 = V.alloc(1)
a(f'''
v_cvt_f32_u32 {fl}, {l15}
v_cvt_f32_u32 {fg}, {vg}
v_mul_f32 {fg}, 4.0, {fg}
v_mul_f32 {f1}, {f2u(1/32)}, {fl}
v_mul_f32 {fb}, {f1}, {fg}
''')
for e in range(8):
    k = 16 * (e >> 2) + (e & 3)
    a(f'v_fmamk_f32 {rv[e]}, {f1}, {f2u(float(k))}, {fb}')
for e in range(8):
    a(f'v_cos_f32 {tc[e]}, {rv[e]}'); a(f'v_sin_f32 {ts[e]}, {rv[e]}')
for i in range(4):
    a(f'v_cvt_pk_bf16_f32 {B1re[0][i]}, {tc[2*i]}, {tc[2*i+1]}')
    a(f'v_cvt_pk_bf16_f32 {B1im[0][i]}, -{ts[2*i]}, -{ts[2*i+1]}')
for i in range(4):
    a(f'v_xor_b32 {B1re[1][i]}, 0x80000000, {B1re[0][i]}')
    a(f'v_xor_b32 {B1im[1][i]}, 0x80000000, {B1im[0][i]}')
for cb in range(2):
    if cb == 0: a(f'v_mul_f32 {f1}, {f2u(1/512)}, {fl}')
    else: a(f'v_add_f32 {f1}, {f2u(16/512)}, {f1}')
    a(f'v_mul_f32 {fb}, {f1}, {fg}')
    for r in range(4): a(f'v_fmamk_f32 {rv[4*cb+r]}, {f1}, {f2u(float(r))}, {fb}')
for cb in range(2):
    for r in range(4):
        a(f'v_cos_f32 {TWc[cb][r]}, {rv[4*cb+r]}'); a(f'v_sin_f32 {TWs[cb][r]}, {rv[4*cb+r]}')
a(f'''
v_lshrrev_b32 {f1}, 1, {l15}
v_and_b32 {fb}, 1, {l15}
v_cvt_f32_u32 {f1}, {f1}
v_cvt_f32_u32 {fb}, {fb}
v_mul_f32 {f1}, {f2u(1/16)}, {f1}
v_mul_f32 {fb}, 0.25, {fb} ; placeholder
''') if False else None
a(f'''
v_lshrrev_b32 {f1}, 1, {l15}
v_and_b32 {fb}, 1, {l15}
v_cvt_f32_u32 {f1}, {f1}
v_cvt_f32_u32 {fb}, {fb}
v_mul_f32 {f1}, {f2u(1/16)}, {f1}
v_mul_f32 {fb}, {f2u(0.25)}, {fb}
v_fmac_f32 {fb}, {f1}, {fg}
s_cmp_lg_u32 {sWave}, 0
s_cselect_b32 {sM}, -1, 0
''')
for r in range(4): a(f'v_fmamk_f32 {rv[r]}, {f1}, {f2u(float(r))}, {fb}')
for r in range(4):
    a(f'v_cos_f32 {tc[r]}, {rv[r]}'); a(f'v_sin_f32 {ts[r]}, {rv[r]}')
for r in range(4):
    a(f'v_cvt_pk_bf16_f32 {M1[r]}, {tc[r]}, {ts[r]}')
    a(f'v_cvt_pk_bf16_f32 {M2[r]}, {ts[r]}, -{tc[r]}')
    a(f'v_cvt_pk_bf16_f32 {M4[r]}, -{ts[r]}, {tc[r]}')
for r in range(4):
    a(f'v_and_b32 {M2[r]}, {sM}, {M2[r]}')
    a(f'v_and_b32 {M3[r]}, {sM}, {M1[r]}')
    a(f'v_bfi_b32 {M4[r]}, {sM}, {M4[r]}, {M1[r]}')
a(f'''
s_cmp_lg_u32 {sWave}, 0
s_cselect_b32 {sT}, 0x11, 0x01
s_cselect_b32 {sT2}, 0xc4, 0x10
v_lshlrev_b32 {f1}, 1, {l15}
v_bfe_i32 {tc[0]}, {sT}, {f1}, 2
v_bfe_i32 {tc[1]}, {sT2}, {f1}, 2
v_cvt_f32_i32 {tc[0]}, {tc[0]}
v_cvt_f32_i32 {tc[1]}, {tc[1]}
v_lshrrev_b32 {MN1[0]}, 16, {tc[0]}
v_lshrrev_b32 {MN2[0]}, 16, {tc[1]}
v_xor_b32 {MN1[1]}, 0x8000, {MN1[0]}
v_xor_b32 {MN2[1]}, 0x8000, {MN2[0]}
v_mov_b32 {MN1[2]}, {MN1[0]}
v_mov_b32 {MN2[2]}, {MN2[0]}
v_mov_b32 {MN1[3]}, {MN1[1]}
v_mov_b32 {MN2[3]}, {MN2[1]}
''')
a(f'''
s_mul_i32 {sT}, {sWave}, 2816
s_add_u32 {sT}, {sT}, {T1IMG}
v_lshl_add_u32 {f1}, {vg}, 6, {l15}
''')
for cb in range(2):
    for j in range(2):
        k0 = 16 * cb + 32 * j
        a(f'v_add_u32 {fb}, {k0}, {f1}')
        a(f'v_mul_u32_u24 {aTk[cb][j]}, 171, {fb}')
        a(f'v_lshrrev_b32 {aTk[cb][j]}, 9, {aTk[cb][j]}')
        a(f'v_add_u32 {fb}, {fb}, {aTk[cb][j]}')
        a(f'v_lshl_add_u32 {aTk[cb][j]}, {fb}, 2, {sT}')
a(f'''
v_min_u32 {aNy}, 1, {vlane}
v_add_u32 {aNy}, 341, {aNy}
v_lshl_add_u32 {aNy}, {aNy}, 2, {sT}
s_lshl_b32 {sT}, {sWave}, 11
v_lshl_add_u32 {aTr}, {vlane}, 3, {sT}
v_lshlrev_b32 {aRd}, 4, v0
s_mul_i32 {sT}, {sIdx}, {XT_S}
s_add_u32 {sK[0]}, {sT}, {XT_B}
s_add_u32 {sK[1]}, {sK[0]}, 4096
s_add_u32 {sK[2]}, {sK[0]}, 8192
s_mov_b32 {sH[0]}, {f2u(math.sqrt(0.5))}
s_waitcnt lgkmcnt(0)
s_mul_i32 {sTag}, {sE}, 0x9E3779B1
s_add_u32 {sTag}, {sTag}, 0x7F4A7C15
v_mov_b32 {XU[3]}, {sTag}
v_mov_b32 {XU[7]}, {sTag}
v_mov_b32 {XU[11]}, {sTag}
v_mov_b32 {XU[10]}, 0
; third T1 store: waves 0..2 only (wave 3 is pushed out of range)
s_cmp_eq_u32 {sWave}, 3
s_cselect_b32 {sT}, 0x40000000, 0
v_add_u32 {vSt3}, {sT}, {aRd}
''')
TU = V.alloc(12, 4)
for i in range(3): a(f'v_mov_b32 {TU[4*i+3]}, {sTag}')
stamp('f')

P = [V.alloc(2, 2) for _ in range(8)]; A_ = [V.alloc(2, 2) for _ in range(8)]
for s in (0, 4, 2, 6, 1, 5, 3, 7):
    a(f'v_lshlrev_b32 {P[s][0]}, 16, {X[s]}')
    a(f'v_and_b32 {P[s][1]}, 0xffff0000, {X[s]}')
for u in range(3):
    a(f'buffer_store_dwordx4 {XU[4*u:4*u+4]}, {aRd}, {sWS}, {sK[u]} offen sc1')
NEG1 = 'neg_lo:[0,1] neg_hi:[0,1]'
if OPT.get('only') == 'conv':
    stamp_flush(); a('s_endpgm')
for i in (0, 2, 1, 3):
    a(f'v_pk_add_f32 {A_[i]}, {P[i]}, {P[i+4]}')
    a(f'v_pk_add_f32 {A_[i+4]}, {P[i]}, {P[i+4]} {NEG1}')
aa, bb = A_[:4], A_[4:]
c0, c1, Re2, Im2, t1, t2, Ra, Rb = P
O = V.alloc(8)
def row_out(q, src):
    a(f'v_cvt_pk_bf16_f32 {O[q]}, {src[0]}, {src[1]}')
    a(f'ds_write_b32 {vT4}, {O[q]} offset:{ROWS + q*1024}')
a(f'''
v_pk_add_f32 {c0}, {aa[0]}, {aa[2]}
v_pk_add_f32 {c1}, {aa[1]}, {aa[3]}
v_pk_add_f32 {Re2}, {aa[0]}, {aa[2]} {NEG1}
v_pk_add_f32 {Im2}, {aa[3]}, {aa[1]} {NEG1}
v_pk_add_f32 {t1}, {bb[1]}, {bb[3]} {NEG1}
v_pk_add_f32 {t2}, {bb[1]}, {bb[3]}
v_pk_add_f32 {Ra}, {c0}, {c1}
v_pk_add_f32 {Rb}, {c0}, {c1} {NEG1}
''')
row_out(4, Re2); row_out(5, Im2)
a(f'''
v_pk_fma_f32 {aa[0]}, {t1}, {sH}, {bb[0]} op_sel_hi:[1,0,1]
v_pk_fma_f32 {aa[1]}, {t2}, {sH}, {bb[2]} op_sel_hi:[1,0,1] neg_lo:[1,0,1] neg_hi:[1,0,1]
v_pk_fma_f32 {aa[2]}, {t1}, {sH}, {bb[0]} op_sel_hi:[1,0,1] neg_lo:[1,0,0] neg_hi:[1,0,0]
v_pk_fma_f32 {aa[3]}, {t2}, {sH}, {bb[2]} op_sel_hi:[1,0,1] neg_lo:[1,0,0] neg_hi:[1,0,0]
''')
row_out(0, Ra); row_out(1, Rb); row_out(2, aa[0]); row_out(3, aa[1]); row_out(6, aa[2]); row_out(7, aa[3])
a.barrier()
stamp('f')
V.release(*P, *A_, O)
AF = [V.alloc(4, 4) for _ in range(2)]
for q in range(2):
    for i in range(2):
        a(f'ds_read_b64_tr_b16 {AF[q][2*i:2*i+2]}, {aTr} offset:{ROWS + q*1024 + i*512}')
Dre = [[V.alloc(4, 4) for cb in range(2)] for q in range(2)]; Dim = [[V.alloc(4, 4) for cb in range(2)] for q in range(2)]
for q in range(2):
    for cb in range(2):
        a(mf16(Dre[q][cb], AF[q], B1re[cb], 0)); a(mf16(Dim[q][cb], AF[q], B1im[cb], 0))
tre = V.alloc(4, 2); tim = V.alloc(4, 2)
BQ = [[V.alloc(4, 4) for cb in range(2)] for q in range(2)]
F = [[V.alloc(4, 4) for cb in range(2)] for s in range(2)]; FN = V.alloc(4, 4)
MM = [[M1, M2], [M3, M4]]
for q in range(2):
    for cb in range(2):
        emit(twiddle(Dre[q][cb], Dim[q][cb], TWc[cb], TWs[cb], tre, tim, BQ[q][cb], -1))
        for s in range(2):
            a(mf16(F[s][cb], MM[s][q], BQ[q][cb], 0 if q == 0 else F[s][cb]))
        if cb == 0: a(mf16(FN, (MN1, MN2)[q], BQ[q][0], 0 if q == 0 else FN))
o2 = V.alloc(10)
a(f'v_cvt_pk_bf16_f32 {o2[8]}, {FN[0]}, {FN[1]}'); a(f'v_cvt_pk_bf16_f32 {o2[9]}, {FN[2]}, {FN[3]}')
a(f'ds_write_b32 {aNy}, {o2[8]}'); a(f'ds_write_b32 {aNy}, {o2[9]} offset:1408')
for cb in range(2):
    for s in range(2):
        for j in range(2):
            o = o2[4*cb + 2*s + j]
            a(f'v_cvt_pk_bf16_f32 {o}, {F[s][cb][2*j]}, {F[s][cb][2*j+1]}')
            a(f'ds_write_b32 {aTk[cb][j]}, {o} offset:{1408*s}')
a(f'''
s_mul_i32 {sT}, {sIdx}, {T1_S}
s_add_u32 {sK[0]}, {sT}, {T1_B}
s_add_u32 {sK[1]}, {sK[0]}, 4096
s_add_u32 {sK[2]}, {sK[0]}, 8192
''')
a.barrier()
for i in range(3): a(f'ds_read_b96 {TU[4*i:4*i+3]}, {aRd} offset:{T1IMG + 4096*i}')
for i in range(3): a(f'buffer_store_dwordx4 {TU[4*i:4*i+4]}, {aRd if i < 2 else vSt3}, {sWS}, {sK[i]} offen sc1')
stamp('f')
V.release(*AF, *Dre[0], *Dre[1], *Dim[0], *Dim[1], *BQ[0], *BQ[1], *F[0], *F[1], FN, o2)
V.release(*B1re, *B1im, *TWc, *TWs, M1, M2, M3, M4, MN1, MN2, *aTk[0], *aTk[1], aNy, aTr)

G = V.alloc(8)
for s in range(8): a(f'v_dot2_f32_bf16 {G[s]}, {X[s]}, {GW}, 0')
gt = V.alloc(4)
for i in range(4):
    a(f'v_add_f32_dpp {gt[i]}, {G[2*i]}, {G[2*i]} row_ror:4 row_mask:0xf bank_mask:0x5')
    a(f'v_add_f32_dpp {gt[i]}, {G[2*i+1]}, {G[2*i+1]} row_ror:4 row_mask:0xf bank_mask:0xa')
for i in range(2):
    a(f'v_add_f32_dpp {G[i]}, {gt[2*i]}, {gt[2*i]} row_ror:8 row_mask:0xf bank_mask:0x3')
    a(f'v_add_f32_dpp {G[i]}, {gt[2*i+1]}, {gt[2*i+1]} row_ror:8 row_mask:0xf bank_mask:0xc')
a(f'''
v_permlane16_swap_b32 {G[0]}, {G[1]}
v_add_f32 {G[0]}, {G[0]}, {G[1]}
v_mov_b32 {G[1]}, {G[0]}
v_permlane32_swap_b32 {G[0]}, {G[1]}
v_add_f32 {G[0]}, {G[0]}, {G[1]}
v_add_f32_dpp {G[0]}, {G[0]}, {G[0]} quad_perm:[1,0,3,2] row_mask:0xf bank_mask:0xf
v_add_f32_dpp {G[0]}, {G[0]}, {G[0]} quad_perm:[2,3,0,1] row_mask:0xf bank_mask:0xf
v_and_b32 {G[2]}, 28, v0
s_lshl_b32 {sT}, {sWave}, 5
v_add_u32 {G[2]}, {sT}, {G[2]}
ds_write_b32 {G[2]}, {G[0]} offset:{GPART}
''')
CW = V.alloc(16, 4)
a(f'''
s_waitcnt vmcnt(6)
s_cmp_ge_u32 {sGrp}, 22
s_cbranch_scc1 L_now2
s_and_b32 {sT}, {sP1}, 1
s_lshl_b32 {sT}, {sT}, 4
s_mov_b32 {sT2}, 0x05040100
s_mov_b32 {sM}, 0x07060302
''')
for i in range(6):
    a(f'v_alignbit_b32 {WR[i]}, {WR[i+1]}, {WR[i]}, {sT}')
    a(f'v_alignbit_b32 {WI[i]}, {WI[i+1]}, {WI[i]}, {sT}')
for c in range(12):
    a(f'v_perm_b32 {CW[4*(c//3) + c%3]}, {WI[c//2]}, {WR[c//2]}, {sM if c & 1 else sT2}')
for u in range(4): a(f'ds_write_b96 {aRd}, {CW[4*u:4*u+3]} offset:{WIMG + 4096*u}')
a('L_now2:')
a('s_waitcnt lgkmcnt(0)')
a('s_barrier')
stamp('f')
V.release(WR, WI, vWo, GW, gt)
a(f'''
v_and_b32 {G[2]}, 7, v0
v_lshlrev_b32 {G[2]}, 2, {G[2]}
''')
for i in range(4): a(f'ds_read_b32 {G[4+i]}, {G[2]} offset:{GPART + 32*i}')
a(f'''
v_add_f32 {G[4]}, {G[4]}, {G[5]}
v_add_f32 {G[6]}, {G[6]}, {G[7]}
v_add_f32 {G[4]}, {G[4]}, {G[6]}
v_mul_f32 {G[4]}, {f2u(-1/math.log(2))}, {G[4]}
v_exp_f32 {G[4]}, {G[4]}
v_add_f32 {G[4]}, 1.0, {G[4]}
v_rcp_f32 {G[4]}, {G[4]}
v_sub_f32 {G[5]}, 1.0, {G[4]}
''')
for s in range(8):
    a(f'v_readlane_b32 {sG[2*s]}, {G[4]}, {s}'); a(f'v_readlane_b32 {sG[2*s+1]}, {G[5]}, {s}')
V.release(G)
a(f'''
s_cmp_ge_u32 {sGrp}, 22
s_cbranch_scc1 L_p3
''')

p2start = nstamp[0]
WQ = CW
aWq = V.alloc(1)
a(f'''
v_lshl_add_u32 {aWq}, {vg}, 6, {l15}
v_lshlrev_b32 {aWq}, 4, {aWq}
s_lshl_b32 {sT}, {sWave}, 12
v_add_u32 {aWq}, {sT}, {aWq}
''')
for r in range(4): a(f'ds_read_b96 {WQ[4*r:4*r+3]}, {aWq} offset:{WIMG + 256*r}')
S1re = V.alloc(4, 4); S1im = V.alloc(4, 4); S2re = V.alloc(4, 4); S2im = V.alloc(4, 4)
S3re = V.alloc(4, 4); S3im = V.alloc(4, 4); S4re = V.alloc(4, 4); S4im = V.alloc(4, 4)
T1c = V.alloc(4, 2); T1s = V.alloc(4, 2); T2c = V.alloc(4, 2); T2s = V.alloc(4, 2)
Wc = [V.alloc(4, 2) for _ in range(3)]; Ws = [V.alloc(4, 2) for _ in range(3)]
fq = V.alloc(1); fp1 = V.alloc(1)
a(f'''
v_cvt_f32_i32 {fp1}, {sP1}
v_fmamk_f32 {fq}, {fl}, {f2u(8.0)}, {fp1}
''')
def angles(dst, f, base, n=4):
    for r in range(n): a(f'v_fmamk_f32 {dst[r]}, {f}, {f2u(float(r))}, {base}')
def cossin(c, s, ang, n=4):
    for r in range(n):
        a(f'v_cos_f32 {c[r]}, {ang[r]}'); a(f'v_sin_f32 {s[r]}, {ang[r]}')
a(f'v_mul_f32 {f1}, {f2u(1/128)}, {fq}'); a(f'v_mul_f32 {fb}, {f1}, {fg}')
angles(rv, f1, fb)
for r in range(4): a(f'v_mul_f32 {rv[4+r]}, {f2u(1/16)}, {rv[r]}')
cossin(tc, ts, rv); cossin(T1c, T1s, rv[4:8])
for r in range(4):
    a(f'v_cvt_pk_bf16_f32 {S1re[r]}, {tc[r]}, {ts[r]}'); a(f'v_cvt_pk_bf16_f32 {S1im[r]}, -{ts[r]}, {tc[r]}')
a(f'v_mul_f32 {f1}, {f2u(1/16)}, {fl}'); a(f'v_mul_f32 {fb}, {f1}, {fg}')
angles(rv, f1, fb); cossin(tc, ts, rv)
for r in range(4):
    a(f'v_cvt_pk_bf16_f32 {S2re[r]}, {tc[r]}, {ts[r]}'); a(f'v_cvt_pk_bf16_f32 {S2im[r]}, -{ts[r]}, {tc[r]}')
    a(f'v_cvt_pk_bf16_f32 {S3re[r]}, {tc[r]}, -{ts[r]}'); a(f'v_cvt_pk_bf16_f32 {S3im[r]}, {ts[r]}, {tc[r]}')
a(f'''
v_fmamk_f32 {fb}, {fg}, {f2u(8.0)}, {fp1}
v_mul_f32 {fb}, {fb}, {fl}
v_mul_f32 {fb}, {f2u(1/128)}, {fb}
''')
angles(rv, f1, fb)
for r in range(4): a(f'v_mul_f32 {rv[4+r]}, {f2u(1/16)}, {rv[r]}')
cossin(tc, ts, rv); cossin(T2c, T2s, rv[4:8])
for r in range(4):
    a(f'v_cvt_pk_bf16_f32 {S4re[r]}, {tc[r]}, -{ts[r]}'); a(f'v_cvt_pk_bf16_f32 {S4im[r]}, {ts[r]}, {tc[r]}')
for k in range(3):
    for r in range(4):
        a(f'v_lshlrev_b32 {Wc[k][r]}, 16, {WQ[4*r+k]}'); a(f'v_and_b32 {Ws[k][r]}, 0xffff0000, {WQ[4*r+k]}')
a(f'''
s_or_b32 {sT}, {sGrp}, {sWave}
s_cmp_eq_u32 {sT}, 0
s_cselect_b32 {sH[1]}, 0.5, 1.0
''')
for h in (0, 2):
    a(f'v_pk_mul_f32 {Wc[0][h:h+2]}, {Wc[0][h:h+2]}, {sH} op_sel:[0,1]')
    a(f'v_pk_mul_f32 {Ws[0][h:h+2]}, {Ws[0][h:h+2]}, {sH} op_sel:[0,1]')
aG = V.alloc(1); aGw = V.alloc(1); aGr = V.alloc(1); aUw = V.alloc(1); aUr = V.alloc(1)
L = CW
vt = V.alloc(1); vt2 = V.alloc(1)
a(f'''
v_bfe_u32 {vt}, v0, 2, 4
s_lshl_b32 {sT}, {sWave}, 6
v_add_u32 {vt}, {sT}, {vt}
v_mul_u32_u24 {aG}, {T1_S}, {vt}
v_and_b32 {vt}, 3, v0
v_lshl_add_u32 {aG}, {vt}, 4, {aG}
s_mul_i32 {sT}, {sW8}, 22
s_add_u32 {sT}, {sT}, {sGrp}
s_lshl_b32 {sK[0]}, {sT}, 6
s_add_u32 {sK[0]}, {sK[0]}, {T1_B}
s_add_u32 {sK[1]}, {sK[0]}, {16*T1_S}
s_add_u32 {sK[2]}, {sK[0]}, {32*T1_S}
s_add_u32 {sK[3]}, {sK[0]}, {48*T1_S}
s_mul_i32 {sE}, {sT}, {T2_S}
s_add_u32 {sE}, {sE}, {T2_B}
v_mul_u32_u24 {aGw}, {GIN_S}, {vt}
v_lshrrev_b32 {vt2}, 2, v0
v_lshl_add_u32 {aGw}, {vt2}, 4, {aGw}
s_mul_i32 {sT}, {sWave}, {GIN_S}
v_lshl_add_u32 {aGr}, {vlane}, 4, {sT}
v_lshrrev_b32 {aUw}, 1, {l15}
v_add_u32 {aUw}, {sWave}, {aUw}
v_and_b32 {aUw}, 3, {aUw}
v_lshlrev_b32 {aUw}, 4, {aUw}
v_lshl_add_u32 {aUr}, {vg}, 6, {l15}
v_lshl_add_u32 {aUw}, {aUr}, 6, {aUw}
v_lshrrev_b32 {aUr}, 3, v0
v_add_u32 {aUr}, {aUr}, v0
v_and_b32 {aUr}, 3, {aUr}
v_lshlrev_b32 {aUr}, 4, {aUr}
v_lshl_add_u32 {aUr}, {vt2}, 6, {aUr}
''')
UU = V.alloc(16, 4)
for r in range(4): a(f'v_mov_b32 {UU[4*r+3]}, {sTag}')
stamp('f')
loads = [f'buffer_load_dwordx4 {L[4*i:4*i+4]}, {aG}, {sWS}, {sK[i]} offen sc1' for i in range(4)]
a('s_waitcnt vmcnt(0)')
emit(loads)
check_retry(loads, [L[4*i+3] for i in range(4)], vt, vt2)
stamp('f')
for i in range(4):
    for j in range(i + 1, 4): a(f'v_swap_b32 {L[4*i+j]}, {L[4*j+i]}')
for k in range(3): a(f'ds_write_b128 {aGw}, {L[4*k:4*k+4]} offset:{GIN + 1024*k}')
a.barrier()
for k in range(3): a(f'ds_read_b128 {L[4*k:4*k+4]}, {aGr} offset:{GIN + 1024*k}')
D1 = [V.alloc(4, 4) for _ in range(3)]; D2 = [V.alloc(4, 4) for _ in range(3)]
Z = [L[4*k:4*k+4] for k in range(3)]
for k in range(3):
    a(mf16(D1[k], Z[k], S1re, 0)); a(mf16(D2[k], Z[k], S1im, 0))
for k in range(3):
    emit(twiddle(D1[k], D2[k], T1c, T1s, tre, tim, Z[k], -1))
    a(mf16(D1[k], S2re, Z[k], 0)); a(mf16(D2[k], S2im, Z[k], 0))
for k in range(3):
    emit(twiddle(D1[k], D2[k], Wc[k], Ws[k], tre, tim, Z[k], +1))
    a(mf16(D1[k], Z[k], S3re, 0)); a(mf16(D2[k], Z[k], S3im, 0))
for k in range(3):
    emit(twiddle(D1[k], D2[k], T2c, T2s, tre, tim, Z[k], +1))
    a(mf16(D1[k], S4re, Z[k], 0)); a(mf16(D2[k], S4im, Z[k], 0))
for k in range(3):
    for r in range(4): a(f'v_cvt_pk_bf16_f32 {UU[4*r+k]}, {D1[k][r]}, {D2[k][r]}')
for r in range(4): a(f'ds_write_b128 {aUw}, {UU[4*r:4*r+4]} offset:{T2IMG + 1024*r}')
a(f'''
s_add_u32 {sK[1]}, {sE}, 4096
s_add_u32 {sK[2]}, {sE}, 8192
s_add_u32 {sK[3]}, {sE}, 12288
''')
a.barrier()
for i in range(4): a(f'ds_read_b128 {UU[4*i:4*i+4]}, {aUr} offset:{T2IMG + 4096*i}')
for i in range(4): a(f'buffer_store_dwordx4 {UU[4*i:4*i+4]}, {aRd}, {sWS}, {sK[i] if i else sE} offen sc1')
stamp('f')
a('L_p3:')
V.release(S1re, S1im, S2re, S2im, S3re, S3im, S4re, S4im, T1c, T1s, T2c, T2s, *Wc, *Ws, fq, fp1, aG, aGw, aGr, aUw, aUr, aWq, *D1, *D2, UU)
p2end = nstamp[0]

B1 = [[V.alloc(4, 4) for c in range(2)] for q in range(2)]
T3c = [V.alloc(4, 2) for _ in range(2)]; T3s = [V.alloc(4, 2) for _ in range(2)]
B2 = [[V.alloc(4, 4) for db in range(2)] for blk in range(2)]
AN = [V.alloc(4, 4) for q in range(2)]
NB = V.alloc(4, 4)
msk = V.alloc(2); dl = V.alloc(1)
a(f'''
s_cmp_lg_u32 {sWave}, 0
s_cselect_b32 {sM}, -1, 0
s_cselect_b32 {sT}, {f2u(0.25)}, 0
v_and_b32 {fb}, 1, {vg}
v_cvt_f32_u32 {fb}, {fb}
v_mul_f32 {f1}, {f2u(1/16)}, {fl}
v_mul_f32 {fb}, 4.0, {fb}
v_mul_f32 {fb}, {fb}, {f1}
v_bfe_i32 {msk[1]}, {vg}, 1, 1
v_not_b32 {msk[0]}, {msk[1]}
v_and_b32 {dl}, 0x80000000, {msk[1]}
v_or_b32 {dl}, {sT}, {dl}
v_or_b32 {msk[0]}, {sM}, {msk[0]}
v_or_b32 {msk[1]}, {sM}, {msk[1]}
''')
angles(rv, f1, fb)
for r in range(4): a(f'v_add_f32 {rv[4+r]}, {rv[r]}, {dl}')
cossin(tc, ts, rv, 8)
for q in range(2):
    for r in range(4):
        a(f'v_cvt_pk_bf16_f32 {B1[q][0][r]}, {tc[4*q+r]}, -{ts[4*q+r]}')
        a(f'v_cvt_pk_bf16_f32 {B1[q][1][r]}, {ts[4*q+r]}, {tc[4*q+r]}')
for q in range(2):
    for r in range(4):
        a(f'v_and_b32 {B1[q][0][r]}, {msk[q]}, {B1[q][0][r]}')
        a(f'v_and_b32 {B1[q][1][r]}, {msk[q]}, {B1[q][1][r]}')
a(f'v_mul_f32 {f1}, {f2u(1/512)}, {fl}'); a(f'v_mul_f32 {fb}, {f1}, {fg}')
angles(rv, f1, fb)
for r in range(4): a(f'v_fmamk_f32 {rv[4+r]}, {f1}, {f2u(16.0)}, {rv[r]}')
for blk in range(2): cossin(T3c[blk], T3s[blk], rv[4*blk:4*blk+4])
a(f's_mov_b32 {sH[1]}, {f2u(2.0**-19)}')
for blk in range(2):
    for h in (0, 2):
        a(f'v_pk_mul_f32 {T3c[blk][h:h+2]}, {T3c[blk][h:h+2]}, {sH} op_sel:[0,1]')
        a(f'v_pk_mul_f32 {T3s[blk][h:h+2]}, {T3s[blk][h:h+2]}, {sH} op_sel:[0,1]')
a(f'v_mul_f32 {f1}, {f2u(1/32)}, {fl}'); a(f'v_mul_f32 {fb}, {f1}, {fg}')
angles(rv, f1, fb); cossin(tc, ts, rv)
a(f'v_bfe_i32 {dl}, {l15}, 0, 1'); a(f'v_and_b32 {dl}, 0x80008000, {dl}')
for r in range(4): a(f'v_cvt_pk_bf16_f32 {B2[0][0][r]}, {tc[r]}, -{ts[r]}')
for r in range(4):
    a(f'v_xor_b32 {B2[1][0][r]}, {dl}, {B2[0][0][r]}')
    if r & 1: a(f'v_xor_b32 {B2[0][1][r]}, 0x80008000, {B2[0][0][r]}')
    else: a(f'v_mov_b32 {B2[0][1][r]}, {B2[0][0][r]}')
for r in range(4): a(f'v_xor_b32 {B2[1][1][r]}, {dl}, {B2[0][1][r]}')
a(f'''
s_cmp_lg_u32 {sWave}, 0
s_cselect_b32 {sK[0]}, 0x3580, 0
s_cselect_b32 {sK[1]}, 0xb5800000, 0
s_mov_b32 {sK[2]}, 0x3580
s_cmov_b32 {sK[2]}, 0x35800000
v_cmp_eq_u32 vcc, 0, {vg}
v_xor_b32 {tc[0]}, 0x3580, {dl}
v_xor_b32 {tc[1]}, {sK[0]}, {dl}
v_xor_b32 {tc[2]}, {sK[1]}, {dl}
v_xor_b32 {tc[3]}, {sK[2]}, {dl}
v_cndmask_b32 {AN[0][0]}, 0, {tc[0]}, vcc
v_cndmask_b32 {AN[0][1]}, 0, {tc[1]}, vcc
v_cndmask_b32 {AN[1][0]}, 0, {tc[2]}, vcc
v_cndmask_b32 {AN[1][1]}, 0, {tc[3]}, vcc
v_mov_b32 {AN[0][2]}, 0
v_mov_b32 {AN[0][3]}, 0
v_mov_b32 {AN[1][2]}, 0
v_mov_b32 {AN[1][3]}, 0
v_mov_b32 {NB[2]}, 0
v_mov_b32 {NB[3]}, 0
''')
g1 = V.alloc(1); g3 = V.alloc(1); w3 = V.alloc(1); aA = V.alloc(1); aF = V.alloc(3); aN = V.alloc(1); aYw = V.alloc(1); aYr = V.alloc(1)
a(f'''
v_lshrrev_b32 {vt}, 2, v0
v_mul_u32_u24 {g1}, {T2_S}, {vt}
v_and_b32 {vt2}, 3, v0
v_lshl_add_u32 {g1}, {vt2}, 4, {g1}
v_add_u32 {w3}, 512, v0
v_min_u32 {w3}, 703, {w3}
v_lshrrev_b32 {vt}, 2, {w3}
v_mul_u32_u24 {g3}, {T2_S}, {vt}
v_and_b32 {vt2}, 3, {w3}
v_lshl_add_u32 {g3}, {vt2}, 4, {g3}
v_lshlrev_b32 {w3}, 4, {w3}
s_lshl_b32 {sK[0]}, {sIdx}, 6
s_add_u32 {sK[0]}, {sK[0]}, {T2_B}
s_add_u32 {sK[1]}, {sK[0]}, {64*T2_S}
v_mul_u32_u24 {aA}, {AT_S}, v0
s_lshl_b32 {sK[2]}, {sIdx}, 4
s_add_u32 {sK[2]}, {sK[2]}, {AT_B}
s_add_u32 {sK[3]}, {sK[2]}, 4096
s_add_u32 {sE}, {sK[2]}, 8192
v_and_b32 {vt}, 1, {vg}
v_lshl_add_u32 {vt}, {vt}, 7, {l15}
v_lshrrev_b32 {vt2}, 1, {vg}
v_mul_u32_u24 {vt2}, 1408, {vt2}
s_mul_i32 {sT}, {sWave}, 2816
v_add_u32 {vt2}, {sT}, {vt2}
''')
for j in range(3):
    a(f'v_add_u32 {fb}, {16*j}, {vt}')
    a(f'v_mul_u32_u24 {aF[j]}, 171, {fb}')
    a(f'v_lshrrev_b32 {aF[j]}, 9, {aF[j]}')
    a(f'v_add_u32 {fb}, {fb}, {aF[j]}')
    a(f'v_lshl_add_u32 {aF[j]}, {fb}, 2, {vt2}')
a(f'''
v_mov_b32 {aN}, {sT}
v_bfe_u32 {vt}, {l15}, 1, 2
v_xor_b32 {vt}, {vt}, {vg}
v_lshlrev_b32 {vt}, 4, {vt}
v_lshl_add_u32 {aYw}, {l15}, 6, {vt}
s_lshl_b32 {sT}, {sWave}, 12
v_add_u32 {aYw}, {sT}, {aYw}
v_lshrrev_b32 {vt}, 3, v0
v_xor_b32 {vt}, {vt}, v0
v_and_b32 {vt}, 6, {vt}
v_and_b32 {vt2}, 1, v0
v_or_b32 {vt}, {vt}, {vt2}
v_lshlrev_b32 {vt}, 3, {vt}
v_lshrrev_b32 {vt2}, 3, v0
v_lshl_add_u32 {aYr}, {vt2}, 6, {vt}
''')
L3 = TU
loads = [f'buffer_load_dwordx4 {L3[0:4]}, {g1}, {sWS}, {sK[0]} offen sc1',
         f'buffer_load_dwordx4 {L3[4:8]}, {g1}, {sWS}, {sK[1]} offen sc1',
         f'buffer_load_dwordx4 {L3[8:12]}, {g3}, {sWS}, {sK[0]} offen sc1']
a('s_waitcnt vmcnt(0)')
a(f'''
s_cmp_lt_u32 {sGrp}, 22
s_cbranch_scc1 L_t2go
s_mov_b64 exec, 1
s_mov_b32 {sSpin}, 0
L_canary:
buffer_load_dwordx4 {L3[0:4]}, {g1}, {sWS}, {sK[1]} offen sc1
s_add_u32 {sSpin}, {sSpin}, 1
s_waitcnt vmcnt(0)
v_cmp_ne_u32 vcc, {sTag}, {L3[3]}
s_cbranch_vccz L_canok
s_sleep 4
s_cmp_lt_u32 {sSpin}, {SPIN}
s_cbranch_scc1 L_canary
L_canok:
s_mov_b64 exec, -1
L_t2go:
''')
stamp('f')
emit(loads)
check_retry(loads, [L3[3], L3[7], L3[11]], vt, vt2)
stamp('f')
AU = XU
aloads = [f'buffer_load_dwordx4 {AU[4*u:4*u+4]}, {aA}, {sWS}, {(sK[2], sK[3], sE)[u]} offen sc1' for u in range(3)]
a(f'ds_write_b128 {aRd}, {L3[0:4]} offset:{T2IN}')
a(f'ds_write_b128 {aRd}, {L3[4:8]} offset:{T2IN + 4096}')
a(f'ds_write_b128 {w3}, {L3[8:12]} offset:{T2IN}')
emit(aloads)
a.barrier()
AF = [V.alloc(4, 4) for _ in range(2)]
for blk in range(2):
    for r in range(4):
        off = 16 * blk + 32 * r
        a(f'ds_read_b32 {AF[blk][r]}, {aF[(off % 48) // 16]} offset:{T2IN + 256 * (off // 48)}')
a(f'ds_read_b32 {NB[0]}, {aN} offset:{T2IN + 341*4}')
a(f'ds_read_b32 {NB[1]}, {aN} offset:{T2IN + 341*4 + 1408}')
Dre = [[V.alloc(4, 4) for b in range(2)] for q in range(2)]; Dim = [[V.alloc(4, 4) for b in range(2)] for q in range(2)]
VV = [[V.alloc(4, 4) for b in range(2)] for q in range(2)]
Y = [[V.alloc(4, 4) for db in range(2)] for q in range(2)]
for blk in range(2):
    for q in range(2):
        a(mf16(Dre[q][blk], AF[blk], B1[q][0], 0)); a(mf16(Dim[q][blk], AF[blk], B1[q][1], 0))
for q in range(2):
    for db in range(2): a(mf16(Y[q][db], AN[q], NB, 0))
for q in range(2):
    for blk in range(2):
        emit(twiddle(Dre[q][blk], Dim[q][blk], T3c[blk], T3s[blk], tre, tim, VV[q][blk], +1))
        for db in range(2): a(mf16(Y[q][db], VV[q][blk], B2[blk][db], Y[q][db]))
    if q == 1:
        for db in range(2): a(f'ds_write_b128 {aYw}, {Y[0][db]} offset:{YROW + 1024*db}')
for db in range(2): a(f'ds_write_b128 {aYw}, {Y[1][db]} offset:{YROW + 2048 + 1024*db}')
stamp('f')
if OPT.get('only') == 'fft': a('s_waitcnt vmcnt(0)')
else: check_retry(aloads, [AU[3], AU[7], AU[11]], vt, vt2)
stamp('f')
V.release(*Dre[0], *Dre[1], *Dim[0], *Dim[1], *VV[0], *VV[1], *AF)
GA = [V.alloc(2, 2) for _ in range(8)]
for s in range(8):
    a(f'v_lshlrev_b32 {GA[s][0]}, 16, {X[s]}'); a(f'v_and_b32 {GA[s][1]}, 0xffff0000, {X[s]}')
a.barrier()
Rr = [V.alloc(2, 2) for _ in range(8)]
for q in (0, 1, 4, 5, 2, 6, 3, 7): a(f'ds_read_b64 {Rr[q]}, {aYr} offset:{YROW + 2048*q}')
for s in range(8): a(f'v_pk_mul_f32 {GA[s]}, {GA[s]}, {sG[2*s:2*s+2]} op_sel_hi:[1,0]')
R0, R4, A1, Bq1, A2, Bq2, A3, Bq3 = Rr
E = [V.alloc(2, 2) for _ in range(4)]; e0 = V.alloc(2, 2); e1 = V.alloc(2, 2)
Oo = [V.alloc(2, 2) for _ in range(4)]
a(f'''
v_pk_add_f32 {e0}, {R0}, {R4}
v_pk_add_f32 {e1}, {R0}, {R4} {NEG1}
v_pk_add_f32 {E[0]}, {e0}, {A2}
v_pk_add_f32 {E[2]}, {e0}, {A2} {NEG1}
v_pk_add_f32 {E[1]}, {e1}, {Bq2}
v_pk_add_f32 {E[3]}, {e1}, {Bq2} {NEG1}
v_pk_add_f32 {Oo[0]}, {A1}, {A3}
v_pk_add_f32 {e0}, {A1}, {A3} {NEG1}
v_pk_add_f32 {Oo[2]}, {Bq1}, {Bq3} {NEG1}
v_pk_add_f32 {e1}, {Bq1}, {Bq3}
''')
yy = Rr
a(f'''
v_pk_add_f32 {yy[0]}, {E[0]}, {Oo[0]}
v_pk_add_f32 {yy[4]}, {E[0]}, {Oo[0]} {NEG1}
v_pk_add_f32 {Oo[1]}, {e1}, {e0}
v_pk_add_f32 {Oo[3]}, {e1}, {e0} {NEG1}
v_pk_add_f32 {yy[2]}, {E[2]}, {Oo[2]}
v_pk_add_f32 {yy[6]}, {E[2]}, {Oo[2]} {NEG1}
v_pk_fma_f32 {yy[1]}, {Oo[1]}, {sH}, {E[1]} op_sel_hi:[1,0,1]
v_pk_fma_f32 {yy[5]}, {Oo[1]}, {sH}, {E[1]} op_sel_hi:[1,0,1] neg_lo:[1,0,0] neg_hi:[1,0,0]
v_pk_fma_f32 {yy[3]}, {Oo[3]}, {sH}, {E[3]} op_sel_hi:[1,0,1]
v_pk_fma_f32 {yy[7]}, {Oo[3]}, {sH}, {E[3]} op_sel_hi:[1,0,1] neg_lo:[1,0,0] neg_hi:[1,0,0]
''')
of = V.alloc(8)
for s in (0, 4, 2, 6, 1, 5, 3, 7):
    a(f'v_pk_fma_f32 {yy[s]}, {yy[s]}, {sG[2*s:2*s+2]}, {GA[s]} op_sel:[0,1,0]')
for s in (0, 4, 2, 6, 1, 5, 3, 7):
    a(f'v_cvt_pk_bf16_f32 {of[s]}, {yy[s][0]}, {yy[s][1]}')
    a(f'buffer_store_dword {of[s]}, {vXo}, {sOut}, {sOff[s] if s else 0} offen')
stamp('f')
a(DELAY(2))
a(f'''
s_or_b32 {sT}, s2, {sWave}
s_cmp_lg_u32 {sT}, 0
s_cbranch_scc1 L_fdone
v_mov_b32 {of[0]}, {sTag}
v_mov_b32 {vt}, 0
s_mov_b64 exec, 1
buffer_store_dword {of[0]}, {vt}, {sWS}, 0 offen
s_mov_b64 exec, -1
L_fdone:
''')
if STAMP:
    a('s_waitcnt vmcnt(0)'); stamp('f')
stamp_flush()
a('s_endpgm')
nf = nstamp[0]
vmax = V.hi

a.forget()
nstamp[0] = 0
V = Regs('v', 1, 250)
S2 = Regs('s', 3, 100)
for r in (sWS, sTag, sIdx, sW8, sWave, sT, sT2, sSpin, sPc, sStamp):
    for i in range(r.n): S2.free.discard(r.b + i)
sP = S2.alloc(16, 4); sE = S2.alloc(1); sD = S2.alloc(2); sK = S2.alloc(4); sCh = S2.alloc(1); sHf = S2.alloc(1)
EP_C, EP_R = 28832, 544
UREV, UREV_C = 0, 4224
KC, KC_C = 8448, 3104
EP = 14720
KEO, KEO_C, KEO_O = EP, 9600, 4800
YP, YP_S = EP + 19200, 144
a('L_conv:')
if OPT.get('only') == 'fft': a('s_endpgm')
if STAMP:
    a(f'{CLK} {sStamp}')
    nstamp[0] = 1
a(f's_load_dwordx16 {sP}, s[0:1], 8')
prm = V.alloc(8); vo = V.alloc(1); vo2 = V.alloc(1); vt = V.alloc(1); vt2 = V.alloc(1)
vlane = V.alloc(1); l15 = V.alloc(1); vg = V.alloc(1)
a(f'''
s_lshl_b32 {sT}, {sIdx}, 9
v_lshl_add_u32 {vo}, v0, 1, {sT}
s_lshr_b32 {sCh}, {sWave}, 1
s_and_b32 {sHf}, {sWave}, 1
s_lshl_b32 {sT}, {sIdx}, 1
s_add_u32 {sT}, {sT}, {sCh}
s_lshl_b32 {sT}, {sT}, 1
v_mov_b32 {vo2}, {sT}
v_and_b32 {vlane}, 63, v0
v_and_b32 {l15}, 15, v0
v_bfe_u32 {vg}, v0, 4, 2
s_waitcnt lgkmcnt(0)
global_load_ushort {prm[6]}, {vo2}, {sP[12:14]}
''')
if STAMP: a(f'v_writelane_b32 v255, {sStamp[0]}, 0')
for i in range(6): a(f'global_load_ushort {prm[i]}, {vo}, {sP[2*i:2*i+2]}')
a(f'''
s_load_dword {sE}, {sWS[0:2]}, 0
s_lshl_b32 {sT}, {sIdx}, 2
s_load_dword {sD[0]}, {sP[14:16]}, {sT}
''')
dummy = V.alloc(4)
if opt('pf', 1):
    a(f'v_lshlrev_b32 {vt}, 7, v0')
    a(f'v_min_u32 {vt}, L_codeend-L_pcref-4, {vt}')
    a(f'global_load_dword {dummy[0]}, {vt}, {sPc}')
if opt('tlb', 1):
    holes = []
    for pg in range(6):
        lo, hi = pg << 21, (pg + 1) << 21
        for (b, s, n, used) in ((XT_B, XT_S, 256, 12288), (T1_B, T1_S, 256, 11264), (T2_B, T2_S, 176, 16384), (AT_B, AT_S, 256, 12288)):
            c = [b + i * s + used for i in range(n) if lo <= b + i * s + used < hi]
            if c: holes.append(c[0]); break
    assert len(holes) == 6
    a(f'v_mov_b32 {vt2}, {holes[0]}')
    for i in range(1, 6): a(f'v_writelane_b32 {vt2}, {sT}, {i}' if False else f's_mov_b32 {sT}, {holes[i]}\nv_writelane_b32 {vt2}, {sT}, {i}')
    a(f'buffer_load_dword {dummy[1]}, {vt2}, {sWS}, 0 offen')
stamp('c')
a(DELAY(3))
aEP = V.alloc(1); aE = V.alloc(1); aPm = V.alloc(1); aK0 = V.alloc(1); aK1 = V.alloc(1); aK2 = V.alloc(1)
aX = V.alloc(9); aKw = V.alloc(1); aUw = V.alloc(1); aXg = V.alloc(1); aSt = V.alloc(1)
aB = V.alloc(8); aB0 = V.alloc(4); aAf = V.alloc(1); aYw = V.alloc(1); aYr = V.alloc(1)
zero = V.alloc(4, 4)
a(f'''
s_mul_i32 {sT}, {sCh}, {EP_C}
s_add_u32 {sT}, {sT}, {EP}
v_and_b32 {vt}, 127, v0
v_lshl_add_u32 {aEP}, {vt}, 2, {sT}
v_mul_u32_u24 {vt}, {EP_R}, {l15}
v_lshl_add_u32 {vt}, {vg}, 4, {vt}
v_add_u32 {aPm}, {sT}, {vt}
s_mul_i32 {sT2}, {sHf}, {16*EP_R}
v_add_u32 {aE}, {sT2}, {aPm}
s_lshl_b32 {sT}, {sHf}, 4
v_add_u32 {vo}, {sT}, {l15}
s_mul_i32 {sT}, {sCh}, {KC_C}
s_add_u32 {sT}, {sT}, {KC + 16}
v_lshlrev_b32 {vt}, 3, {vo}
v_lshl_add_u32 {vt}, {vg}, 2, {vt}
v_lshlrev_b32 {vt2}, 2, {vo}
v_add_u32 {vt2}, 256, {vt2}
v_cmp_eq_u32 vcc, 2, {vg}
v_lshlrev_b32 {aK1}, 1, {vo}
v_add_u32 {aK1}, 384, {aK1}
v_cndmask_b32 {vt}, {vt}, {vt2}, vcc
v_cmp_eq_u32 vcc, 3, {vg}
v_mov_b32 {vt2}, 2
v_lshl_add_u32 {aK2}, {vg}, 7, {vo}
v_cndmask_b32 {vt}, {vt}, {aK1}, vcc
v_cndmask_b32 {vt2}, {vt2}, 64, vcc
v_lshl_add_u32 {aK0}, {vt}, 2, {sT}
v_lshl_add_u32 {aK1}, {vt2}, 2, {aK0}
v_add_u32 {aK2}, 512, {aK2}
v_lshl_add_u32 {aK2}, {aK2}, 2, {sT}
v_lshlrev_b32 {vt}, 3, v0
v_lshlrev_b32 {vt2}, 2, v0
v_add_u32 {vt2}, 128, {vt2}
v_min_u32 {vt}, {vt}, {vt2}
v_lshlrev_b32 {vt2}, 1, v0
v_add_u32 {vt2}, 256, {vt2}
v_min_u32 {vt}, {vt}, {vt2}
v_add_u32 {vt2}, 384, v0
v_min_u32 {vt}, {vt}, {vt2}
v_lshlrev_b32 {vt}, 2, {vt}
v_add_u32 {vt}, {KC + 16}, {vt}
v_and_b32 {vt2}, 1, v0
v_lshlrev_b32 {vt2}, 16, {vt2}
v_or_b32 {vt2}, 0x11100000, {vt2}
v_mov_b32 {vo}, 0x22111000
v_cmp_gt_u32 vcc, 128, v0
v_mov_b32 {vo2}, 0x43222100
s_nop 0
v_cndmask_b32 {vt2}, {vt2}, {vo}, vcc
v_cmp_gt_u32 vcc, 64, v0
v_mov_b32 {vo}, 0x76543210
s_nop 0
v_cndmask_b32 {vt2}, {vt2}, {vo2}, vcc
v_cmp_gt_u32 vcc, 32, v0
s_nop 1
v_cndmask_b32 {vt2}, {vt2}, {vo}, vcc
v_cmp_gt_u32 vcc, 33, v0
v_add_u32 {vo}, -4, {vt}
''')
for e in range(8):
    a(f'v_bfe_u32 {aX[e+1]}, {vt2}, {4*e}, 4'); a(f'v_lshl_add_u32 {aX[e+1]}, {aX[e+1]}, 2, {vt}')
a(f'''
v_cndmask_b32 {aX[0]}, {vt}, {vo}, vcc
v_lshrrev_b32 {vt}, 3, v0
v_mul_u32_u24 {aKw}, 144, {vt}
v_and_b32 {vt2}, 7, v0
v_lshl_add_u32 {aKw}, {vt2}, 4, {aKw}
v_lshlrev_b32 {aUw}, 4, {vt}
v_sub_u32 {vt2}, 7, {vt2}
v_lshl_add_u32 {aUw}, {vt2}, 1, {aUw}
v_mul_u32_u24 {aXg}, {XT_S}, v0
v_lshlrev_b32 {aSt}, 4, v0
s_lshl_b32 {sK[0]}, {sIdx}, 4
s_add_u32 {sK[0]}, {sK[0]}, {XT_B}
s_add_u32 {sK[1]}, {sK[0]}, 4096
s_add_u32 {sK[2]}, {sK[0]}, 8192
v_and_b32 {vt}, 3, v0
v_bfe_u32 {vt2}, v0, 4, 1
v_lshl_add_u32 {vt}, {vt2}, 2, {vt}
v_bfe_u32 {vo}, v0, 2, 2
v_bfe_u32 {vo2}, v0, 5, 1
v_lshrrev_b32 {aAf}, 1, {vt}
v_lshl_add_u32 {aAf}, {vo2}, 2, {aAf}
v_add_u32 {aAf}, -3, {aAf}
v_and_b32 {vt2}, 1, {vt}
v_sub_u32 {vt2}, 1, {vt2}
v_mul_u32_u24 {vt2}, {KEO_O}, {vt2}
v_mul_u32_u24 {aYw}, 144, {vo}
s_mul_i32 {sT}, {sCh}, {KEO_C}
s_add_u32 {sT}, {sT}, {KEO + 144}
v_add3_u32 {vt2}, {vt2}, {aYw}, {sT}
v_lshl_add_u32 {aB[0]}, {aAf}, 2, {vt2}
''')
for b in range(1, 8): a(f'v_add_u32 {aB[b]}, {576*b}, {aB[0]}')
for j in range(4):
    a(f'v_add_u32 {aYr}, {j}, {aAf}')
    a(f'v_ashrrev_i32 {aYw}, 31, {aYr}')
    a(f'v_lshl_add_u32 {aYr}, {aYw}, 2, {aYr}')
    a(f'v_lshl_add_u32 {aB0[j]}, {aYr}, 2, {vt2}')
a(f'''
v_and_b32 {aAf}, 31, v0
v_sub_u32 {aAf}, {aAf}, {vo2}
s_mul_i32 {sT}, {sCh}, {UREV_C}
s_add_u32 {sT}, {sT}, {UREV + 32}
v_lshl_add_u32 {aAf}, {aAf}, 4, {sT}
v_lshl_add_u32 {vt}, {vo}, 6, {vt}
v_lshl_add_u32 {vt}, {vo2}, 5, {vt}
v_mul_u32_u24 {aYw}, {YP_S}, {vt}
s_lshl_b32 {sT}, {sWave}, 5
v_add_u32 {aYw}, {sT}, {aYw}
v_mul_u32_u24 {aYr}, {YP_S}, v0
v_mov_b32 {zero[0]}, 0
v_mov_b32 {zero[1]}, 0
v_mov_b32 {zero[2]}, 0
v_mov_b32 {zero[3]}, 0
v_and_b32 {vt}, 7, v0
v_lshlrev_b32 {vt}, 4, {vt}
ds_write_b128 {vt}, {zero} offset:{UREV}
ds_write_b128 {vt}, {zero} offset:{UREV + UREV_C}
ds_write_b128 {zero[0]}, {zero} offset:{KC}
ds_write_b128 {zero[0]}, {zero} offset:{KC + KC_C}
''')
stamp('c')
L2E = 1 / math.log(2); L2Eh = struct.unpack('<f', struct.pack('<f', L2E))[0]; L2El = L2E - L2Eh
dt = V.alloc(1); lm = V.alloc(1); rvv = V.alloc(1); tA = V.alloc(4); tB = V.alloc(4)
z = V.alloc(2, 2); w = V.alloc(2, 2); q = V.alloc(2, 2); cB = V.alloc(2, 2); cC = V.alloc(2, 2)
a(f'''
v_lshlrev_b32 {dt}, 16, {prm[6]}
v_mul_f32 {tA[0]}, {f2u(L2Eh)}, {dt}
s_mov_b32 {sT}, {f2u(L2Eh)}
v_fma_f32 {tA[1]}, {dt}, {sT}, -{tA[0]}
v_exp_f32 {tA[0]}, {tA[0]}
v_fmamk_f32 {tA[1]}, {dt}, {f2u(L2El)}, {tA[1]}
v_mul_f32 {tA[1]}, {f2u(math.log(2))}, {tA[1]}
v_fma_f32 {dt}, {tA[0]}, {tA[1]}, {tA[0]}
v_cvt_pk_bf16_f32 {dt}, {dt}, {dt}
v_and_b32 {dt}, 0xffff0000, {dt}
v_lshlrev_b32 {lm}, 16, {prm[0]}
v_lshlrev_b32 {rvv}, 16, {prm[1]}
v_lshlrev_b32 {cB[0]}, 16, {prm[2]}
v_lshlrev_b32 {cB[1]}, 16, {prm[3]}
v_lshlrev_b32 {cC[0]}, 16, {prm[4]}
v_lshlrev_b32 {cC[1]}, 16, {prm[5]}
v_mul_f32 {lm}, {dt}, {lm}
v_mul_f32 {rvv}, {dt}, {rvv}
v_mul_f32 {cB[0]}, {dt}, {cB[0]}
v_mul_f32 {cB[1]}, {dt}, {cB[1]}
v_mul_f32 {lm}, {f2u(L2Eh)}, {lm}
v_mul_f32 {rvv}, 0.15915494, {rvv}
''')
for i, (d, m) in enumerate(((w, 8.0), (z, 1.0), (q, 256.0))):
    a(f'v_mul_f32 {tA[i]}, {f2u(m)}, {lm}'); a(f'v_mul_f32 {tB[i]}, {f2u(m)}, {rvv}')
for i in range(3):
    a(f'v_exp_f32 {tA[i]}, {tA[i]}'); a(f'v_fract_f32 {tB[i]}, {tB[i]}')
for i, d in enumerate((w, z, q)):
    a(f'v_cos_f32 {d[0]}, {tB[i]}'); a(f'v_sin_f32 {d[1]}, {tB[i]}')
for i, d in enumerate((w, z, q)):
    a(f'v_mul_f32 {d[0]}, {tA[i]}, {d[0]}'); a(f'v_mul_f32 {d[1]}, {tA[i]}, {d[1]}')
ob = V.alloc(14); obi = [0]; obc = [6]
def put(row, val, neg):
    o = ob[2*obc[0] + obi[0] % 2]; obi[0] += 1
    return [f'v_cvt_pk_bf16_f32 {o}, {val[0]}, {"-" if neg else ""}{val[1]}', f'ds_write_b32 {aEP}, {o} offset:{row*EP_R}']
Ec = [[V.alloc(2, 2) for _ in range(2)] for _ in range(4)]
E4 = V.alloc(2, 2)
Pz = [V.alloc(2, 2) for _ in range(8)]; Pq = [V.alloc(2, 2) for _ in range(2)]; Px = [V.alloc(2, 2) for _ in range(3)]
chains = []
head = []
head += [f'v_mov_b32 {ob[0]}, 0x3f80', f'ds_write_b32 {aEP}, {ob[0]} offset:0']
head += cmul(Ec[2][0], w, w) + cmul(Pz[0], cC, cB)
head += put(1, w, 0)
head += cmul(Ec[3][0], Ec[2][0], w) + cmul(E4, Ec[2][0], Ec[2][0])
head += put(2, Ec[2][0], 0) + put(32, Pz[0], 1)
emit(head)
for ch in range(4):
    steps = []; obc[0] = ch
    first = {1: w, 2: Ec[2][0], 3: Ec[3][0], 0: E4}[ch]
    cur = first; idx = ch if ch else 4
    if ch == 3: steps.append(put(3, cur, 0))
    if ch == 0: steps.append(put(4, cur, 0))
    pp = 1
    while idx + 4 < 32:
        nxt = Ec[ch][pp]; pp ^= 1
        steps.append(cmul(nxt, cur, E4)); idx += 4
        steps.append(put(idx, nxt, 0)); cur = nxt
    chains.append(steps)
st = []; obc[0] = 4
for i in range(1, 8):
    st.append(cmul(Pz[i], Pz[i-1], z)); st.append(put(32 + i, Pz[i], 1))
for i, (src, row) in enumerate(((2, 9), (4, 10), (6, 11))):
    st.append(cmul(Px[i], Pz[src], q)); st.append(put(32 + row, Px[i], 1))
st.append(cmul(Px[0], Px[1], q)); st.append(put(32 + 13, Px[0], 1))
st.append(cmul(Px[2], Px[0], q)); st.append(put(32 + 15, Px[2], 1))
chains.append(st)
st = []; cur = Pz[0]; obc[0] = 5
for i, row in enumerate((8, 12, 14, 16, 17, 18, 19, 20)):
    nxt = Pq[i & 1]
    st.append(cmul(nxt, cur, q)); st.append(put(32 + row, nxt, 1)); cur = nxt
chains.append(st)
pos = [[0, 0] for _ in chains]
live = True
while live:
    live = False
    for ci, ch in enumerate(chains):
        si, ii = pos[ci]
        reps = 2 if ci == 4 else 1
        for _ in range(reps):
            si, ii = pos[ci]
            if si >= len(ch): continue
            live = True
            a(ch[si][ii]); ii += 1
            if ii == len(ch[si]): si += 1; ii = 0
            pos[ci] = [si, ii]
a(f'''
s_mul_i32 {sTag}, {sE}, 0x9E3779B1
s_add_u32 {sTag}, {sTag}, 0x7F4A7C15
s_lshr_b32 {sD[1]}, {sD[0]}, 16
s_lshl_b32 {sD[1]}, {sD[1]}, 16
s_and_b32 {sD[0]}, {sD[0]}, 0xffff
''')
a.barrier()
stamp('c')
V.release(*[x for p in Ec for x in p], E4, *Pz, *Pq, *Px, ob, z, w, q, cB, cC, tA, tB, dt, lm, rvv, prm)
XU = V.alloc(12, 4); X = [XU[s + s // 3] for s in range(8)]
xloads = [f'buffer_load_dwordx4 {XU[4*u:4*u+4]}, {aXg}, {sWS}, {sK[u]} offen sc1' for u in range(3)]
FB = [V.alloc(4, 4) for _ in range(8)]; FA = [[V.alloc(4, 4) for _ in range(8)] for _ in range(2)]
K0 = V.alloc(4, 4); K1 = V.alloc(4, 4)
for k in range(8):
    a(f'ds_read_b128 {FB[k]}, {aE} offset:{64*k}')
    a(f'ds_read_b128 {FA[0][k]}, {aPm} offset:{32*EP_R + 64*k}')
    a(f'ds_read_b128 {FA[1][k]}, {aPm} offset:{48*EP_R + 64*k}')
for k in range(8):
    a(mf16(K0, FA[0][k], FB[k], K0 if k else 0)); a(mf16(K1, FA[1][k], FB[k], K1 if k else 0))
emit(xloads)
a(f'ds_write_b64 {aK0}, {K0[0:2]}'); a(f'ds_write_b64 {aK1}, {K0[2:4]}')
a('s_mov_b32 exec_hi, 0')
for r in range(4): a(f'ds_write_b32 {aK2}, {K1[r]} offset:{128*r}')
a('s_mov_b64 exec, -1')
a.barrier()
V.release(*FB, *FA[0], *FA[1], K0, K1)
kv = [V.alloc(9) for _ in range(2)]; kE = [V.alloc(4, 4) for _ in range(2)]; kO = [V.alloc(4, 4) for _ in range(2)]
for c in range(2):
    for e in range(9): a(f'ds_read_b32 {kv[c][e]}, {aX[e]} offset:{KC_C*c}')
for c in range(2):
    for o in range(2): a(f'ds_write_b128 {zero[0]}, {zero} offset:{KEO + KEO_C*c + KEO_O*o + 112}')
for c in range(2):
    for i in range(4):
        a(f'v_cvt_pk_bf16_f32 {kE[c][i]}, {kv[c][2*i+1]}, {kv[c][2*i+2]}')
        a(f'v_cvt_pk_bf16_f32 {kO[c][i]}, {kv[c][2*i]}, {kv[c][2*i+1]}')
    a(f'ds_write_b128 {aKw}, {kE[c]} offset:{KEO + KEO_C*c + 144}')
    a(f'ds_write_b128 {aKw}, {kO[c]} offset:{KEO + KEO_C*c + KEO_O + 144}')
stamp('c')
check_retry(xloads, [XU[3], XU[7], XU[11]], vt, vt2)
stamp('c')
for s in range(8):
    a(f'ds_write_b16 {aUw}, {X[s]} offset:{UREV + 128 + 512*s}')
    a(f'ds_write_b16_d16_hi {aUw}, {X[s]} offset:{UREV + UREV_C + 128 + 512*s}')
a.barrier()
V.release(*kv, *kE, *kO, aEP, aE, aPm, aK0, aK1, aK2, aX, aKw, aUw, zero, vo, vo2, l15, vg, vlane)
stamp('c')

ACC = [V.alloc(16, 4) for _ in range(4)]
FAb = [V.alloc(32, 4) for _ in range(2)]; FBb = [V.alloc(32, 4) for _ in range(2)]
FA = [[FAb[p][4*i:4*i+4] for i in range(8)] for p in range(2)]; FB = [[FBb[p][4*i:4*i+4] for i in range(8)] for p in range(2)]
EM = [FAb[0][8*i:8*i+6] for i in range(4)]
def reads(kp, nmax):
    o = []
    for b in range(nmax + 1):
        o.append(f'ds_read_b128 {FA[kp&1][b]}, {aAf} offset:{512*b + (6 - 2*kp)*16 - 0}')
        if kp == 0:
            for j in range(4): o.append(f'ds_read_b32 {FB[0][b][j]}, {aB0[j]} offset:{576*b}')
        else:
            o.append(f'ds_read2_b32 {FB[kp&1][b][0:2]}, {aB[b]} offset0:{8*kp} offset1:{8*kp+1}')
            o.append(f'ds_read2_b32 {FB[kp&1][b][2:4]}, {aB[b]} offset0:{8*kp+2} offset1:{8*kp+3}')
    return o
DP = 'row_mask:0xf bank_mask:0xf bound_ctrl:1'
def lower(acc, slot, onto=False):
    o = []
    for i in range(4):
        d = EM[i][slot]
        if onto: o.append(f'v_add_f32 {d}, {acc[i]}, {d}'); o.append(f'v_add_f32_dpp {d}, {acc[4+i]}, {d} row_shr:4 {DP}')
        else: o.append(f'v_add_f32_dpp {d}, {acc[4+i]}, {acc[i]} row_shr:4 {DP}')
    for i in range(4): o.append(f'v_add_f32_dpp {EM[i][slot]}, {acc[8+i]}, {EM[i][slot]} row_shr:8 {DP}')
    for i in range(4): o.append(f'v_add_f32_dpp {EM[i][slot]}, {acc[12+i]}, {EM[i][slot]} row_shr:12 {DP}')
    return o
def upper(acc, slot):
    o = []
    for i in range(4): o.append(f'v_mov_b32_dpp {EM[i][slot]}, {acc[12+i]} row_shl:4 {DP}')
    for i in range(4): o.append(f'v_add_f32_dpp {EM[i][slot]}, {acc[8+i]}, {EM[i][slot]} row_shl:8 {DP}')
    for i in range(4): o.append(f'v_add_f32_dpp {EM[i][slot]}, {acc[4+i]}, {EM[i][slot]} row_shl:12 {DP}')
    return o
def conv_variant(taus, plan):
    nmax = max(taus)
    emit(reads(0, nmax))
    if opt('cvtest') == 4:
        n0 = nstamp[0]; stamp('c')
        if taus[0] == 0: nstamp[0] = n0
    for kp in range(4):
        if kp == 0:
            order = sorted([(ti, b) for ti, t in enumerate(taus) for b in range(t + 1)], key=lambda x: max(x[1], taus[x[0]] - x[1]))
        else:
            order = [(ti, b) for ti, t in enumerate(taus) for b in range(t + 1)]
        fill = reads(kp + 1, nmax) if kp < 3 else []
        if opt('cvtest') == 1: fill = []
        if opt('cvtest') == 2: fill = [x for x in fill if 'b128' in x]
        if opt('cvtest') == 3: fill = [x for x in fill if 'b128' not in x]
        seen = set(); pend = []
        for n, (ti, b) in enumerate(order):
            first = kp == 0 and ti not in seen; seen.add(ti)
            a(mf32(ACC[ti], FA[kp&1][taus[ti] - b], FB[kp&1][b], 0 if first else ACC[ti]))
            if kp < 3:
                k = -(-len(fill) // (len(order) - n)) if n >= 1 else 0
                for _ in range(k): a(fill.pop(0))
            else:
                if b == 1 and ti > 0: pend += plan[ti - 1]
                if b == 0 and ti > 0 and taus[ti] == 0: pend += plan[ti - 1]
                for _ in range(min(6, len(pend))): a(pend.pop(0))
        emit(pend)
    emit(plan[len(taus) - 1])
    for i in range(4):
        a(f'ds_write_b128 {aYw}, {EM[i][0:4]} offset:{YP + 8*YP_S*i}')
        a(f'ds_write_b64 {aYw}, {EM[i][4:6]} offset:{YP + 8*YP_S*i + 16}')
a(f's_cmp_eq_u32 {sHf}, 1'); a('s_cbranch_scc1 L_cvb')
conv_variant((0, 3, 4, 7), [lower(ACC[0], 0) + upper(ACC[0], 1), lower(ACC[1], 2) + upper(ACC[1], 3), lower(ACC[2], 3, True) + upper(ACC[2], 4), lower(ACC[3], 5)])
a('s_waitcnt lgkmcnt(0)'); a('s_branch L_cvj'); a('L_cvb:')
conv_variant((1, 2, 5, 6), [lower(ACC[0], 0) + upper(ACC[0], 1), lower(ACC[1], 1, True) + upper(ACC[1], 2), lower(ACC[2], 3) + upper(ACC[2], 4), lower(ACC[3], 4, True) + upper(ACC[3], 5)])
a('s_waitcnt lgkmcnt(0)'); a('L_cvj:')
a('s_barrier')
stamp('c')
V.release(*ACC, *FAb, *FBb)
YV = [V.alloc(6, 2) for _ in range(4)]
for i in range(4):
    a(f'ds_read_b128 {YV[i][0:4]}, {aYr} offset:{YP + 32*i}'); a(f'ds_read_b64 {YV[i][4:6]}, {aYr} offset:{YP + 32*i + 16}')
a(f'''
s_mul_i32 {sT}, {sIdx}, {AT_S}
s_add_u32 {sK[0]}, {sT}, {AT_B}
s_add_u32 {sK[1]}, {sK[0]}, 4096
s_add_u32 {sK[2]}, {sK[0]}, 8192
''')
OU = V.alloc(12, 4)
for u in range(3): a(f'v_mov_b32 {OU[4*u+3]}, {sTag}')
a(f'v_mov_b32 {OU[10]}, 0')
yv = []
for c in range(2):
    A, B = YV[2*c], YV[2*c+1]
    a(f'v_add_f32 {B[0]}, {B[0]}, {A[1]}'); a(f'v_add_f32 {A[2]}, {A[2]}, {B[2]}')
    a(f'v_add_f32 {B[3]}, {B[3]}, {A[4]}'); a(f'v_add_f32 {A[5]}, {A[5]}, {B[5]}')
    yv.append([A[0], B[0], B[1], A[2], A[3], B[3], B[4], A[5]])
for c in range(2):
    for s in range(8): a(f'v_dot2_f32_bf16 {yv[c][s]}, {X[s]}, {sD[c]}, {yv[c][s]}')
for s in range(8): a(f'v_cvt_pk_bf16_f32 {OU[s + s//3]}, {yv[0][s]}, {yv[1][s]}')
for u in range(3): a(f'buffer_store_dwordx4 {OU[4*u:4*u+4]}, {aSt}, {sWS}, {sK[u]} offen sc1')
if STAMP:
    stamp('c'); a('s_waitcnt vmcnt(0)'); stamp('c')
stamp_flush()
a('L_end:')
a('s_endpgm')
a('L_codeend:')
vmax = max(vmax, V.hi)
smax = max(S.hi, S2.hi)

hdr = open('gated_mix__ssm_conv_s4__spectral_gfnet__prompt.s.ref').read().split('; Override launch')[0]
nv = 256
src = hdr + f'''; @launch grid=(512,1,1) block=(256,1,1) lds={LDS_BYTES}
; stampinfo ({nf}, {nstamp[0]}, {list(range(p2start, p2end))})
; Generated by dev/gen.py. One launch, 512 workgroups: ids 0..255 run the 2-D FFT filter path (three phases joined by
; tagged 16-byte hand-off units in d_ws), ids 256..511 build the S4 kernel and run the causal convolution on MFMA.
.amdgcn_target "amdgcn-amd-amdhsa--gfx950"
.text
.globl {KNAME}
.p2align 8
.type {KNAME},@function
{KNAME}:
''' + a.text() + f'''.section .rodata,"a"
.p2align 6
.amdhsa_kernel {KNAME}
  .amdhsa_next_free_vgpr {nv}
  .amdhsa_next_free_sgpr {100 if opt('delay') else max(smax, 16)}
  .amdhsa_accum_offset {nv}
  .amdhsa_group_segment_fixed_size 0
  .amdhsa_kernarg_size 128
  .amdhsa_user_sgpr_count 2
  .amdhsa_user_sgpr_kernarg_segment_ptr 1
  .amdhsa_system_sgpr_workgroup_id_x 1
.end_amdhsa_kernel
'''
open(sys.argv[1], 'w').write(src)
print('vgpr hi', vmax, 'sgpr hi', smax, 'nops', a.nnop, 'lines', len(a.out))
```

```python
import sys, struct, math
from asmlib import Asm, Regs, R

KNAME = 'gated_mix__ssm_conv_s4__spectral_gfnet__prompt_kernel'
OPT = dict(a.split('=') for a in sys.argv[2:] if '=' in a)
def opt(k, d=0): return int(OPT.get(k, d))
STAMP = opt('stamp')

def f2u(x): return '0x%08x' % struct.unpack('<I', struct.pack('<f', x))[0]

XT_B, XT_S = 0x001000, 12416
T1_B, T1_S = 0x310000, 11392
T2_B, T2_S = 0x5E0000, 16512
AT_B, AT_S = 0x8B0000, 12416
WS_USED = 0xC00000
ST_B = 0xB00000 + 0xC0000
SPIN = 20000
LDS_BYTES = 78400

a = Asm()
S = Regs('s', 3, 100)
sWS = S.alloc(4); sTag = S.alloc(1); sIdx = S.alloc(1); sW8 = S.alloc(1); sWave = S.alloc(1)
sT = S.alloc(1); sT2 = S.alloc(1); sSpin = S.alloc(1)
sPc = S.alloc(2)
sStamp = S.alloc(2)
nstamp = [0]
CLK = 's_memtime' if STAMP == 2 else 's_memrealtime'

def stamp(role, V=None):
    if not STAMP: return
    n = nstamp[0]; nstamp[0] += 1
    a(f'{CLK} {sStamp}')
    a('s_waitcnt lgkmcnt(0)')
    a(f'v_writelane_b32 v255, {sStamp[0]}, {n}')

def stamp_flush():
    if not STAMP: return
    a(f'''
    s_lshl_b32 {sT}, s2, 2
    s_add_u32 {sT}, {sT}, {sWave}
    s_lshl_b32 {sT}, {sT}, 6
    s_add_u32 {sT}, {sT}, {ST_B}
    v_and_b32 v254, 63, v0
    v_lshlrev_b32 v254, 2, v254
    s_mov_b64 exec, 0xffff
    buffer_store_dword v255, v254, {sWS}, {sT} offen
    s_mov_b64 exec, -1
    ''')

def DELAY(where):
    if opt('delay') != where: return ''
    where = newlab('d')
    return f's_mov_b32 s99, 0\nL_dly{where}:\n' + 's_nop 0\n' * 29 + f's_add_u32 s99, s99, 1\ns_cmp_lt_u32 s99, 128\ns_cbranch_scc1 L_dly{where}'
lab = [0]
def newlab(p):
    lab[0] += 1
    return f'L_{p}{lab[0]}'

def check_retry(loads, tags, vt, vt2):
    L, D = newlab('chk'), newlab('got')
    a(f's_mov_b32 {sSpin}, 0')
    a(f'{L}:')
    a('s_waitcnt vmcnt(0)')
    a(f'v_xor_b32 {vt}, {sTag}, {tags[0]}')
    a(f'v_xor_b32 {vt2}, {sTag}, {tags[1]}')
    if len(tags) == 3:
        a(f'v_xor_b32 {tags[2]}, {sTag}, {tags[2]}')
        a(f'v_or3_b32 {vt}, {vt}, {vt2}, {tags[2]}')
    else:
        a(f'v_xor_b32 {tags[2]}, {sTag}, {tags[2]}')
        a(f'v_xor_b32 {tags[3]}, {sTag}, {tags[3]}')
        a(f'v_or3_b32 {vt}, {vt}, {vt2}, {tags[2]}')
        a(f'v_or_b32 {vt}, {vt}, {tags[3]}')
    a(f'v_cmpx_ne_u32 vcc, 0, {vt}')
    a(f's_cbranch_execz {D}')
    for l in loads: a(l)
    a(f's_add_u32 {sSpin}, {sSpin}, 1')
    a(f's_cmp_lt_u32 {sSpin}, {SPIN}')
    a(f's_cbranch_scc1 {L}')
    a('s_waitcnt vmcnt(0)')
    a(f'{D}:')
    a('s_mov_b64 exec, -1')
    a.forget_vm()

Asm.forget_vm = lambda self: setattr(self, 'vm', [])

def cmul(d, p, z):
    return [f'v_pk_mul_f32 {d}, {p}, {z} op_sel_hi:[0,1]',
            f'v_pk_fma_f32 {d}, {p}, {z}, {d} op_sel:[1,1,0] op_sel_hi:[1,0,1] neg_lo:[1,0,0]']

def twiddle(re, im, C, Sn, tre, tim, out, sign):
    o = []
    for h in (0, 2):
        s = slice(h, h + 2)
        o.append(f'v_pk_mul_f32 {tre[s]}, {re[s]}, {C[s]}')
        o.append(f'v_pk_mul_f32 {tim[s]}, {im[s]}, {C[s]}')
    for h in (0, 2):
        s = slice(h, h + 2)
        n1 = 'neg_lo:[1,0,0] neg_hi:[1,0,0]' if sign > 0 else ''
        n2 = '' if sign > 0 else 'neg_lo:[1,0,0] neg_hi:[1,0,0]'
        o.append(f'v_pk_fma_f32 {tre[s]}, {im[s]}, {Sn[s]}, {tre[s]} {n1}')
        o.append(f'v_pk_fma_f32 {tim[s]}, {re[s]}, {Sn[s]}, {tim[s]} {n2}')
    for r in range(4):
        o.append(f'v_cvt_pk_bf16_f32 {out[r]}, {tre[r]}, {tim[r]}')
    return o

def emit(lst):
    for x in lst: a(x)

def mf16(d, A, B, c): return f'v_mfma_f32_16x16x32_bf16 {d}, {A}, {B}, {c}'
def mf32(d, A, B, c): return f'v_mfma_f32_32x32x16_bf16 {d}, {A}, {B}, {c}'

a(f'''
s_cmp_ge_u32 s2, 512
s_cbranch_scc1 L_end
{DELAY(1)}
{'s_memrealtime s[96:97]' if opt('fix') else ''}
s_load_dwordx2 {sWS[0:2]}, s[0:1], 120
s_getpc_b64 {sPc}
L_pcref:
s_mov_b32 {sWS[2]}, {WS_USED if not STAMP else 0x1000000}
s_mov_b32 {sWS[3]}, 0x20000
s_and_b32 {sW8}, s2, 7
s_bfe_u32 {sT}, s2, 0x50003
s_lshl_b32 {sIdx}, {sW8}, 5
s_add_u32 {sIdx}, {sIdx}, {sT}
v_lshrrev_b32 v1, 6, v0
s_cmp_ge_u32 s2, 256
v_readfirstlane_b32 {sWave}, v1
s_cbranch_scc1 L_conv
''')

V = Regs('v', 1, 250)
sX = S.alloc(4); sWr = S.alloc(4); sWi = S.alloc(4); sOut = S.alloc(4); sGw = S.alloc(2)
sOff = S.alloc(8)
sGrp = S.alloc(1); sP1 = S.alloc(1); sE = S.alloc(1); sM = S.alloc(1); sH = S.alloc(2); sG = S.alloc(16)
sK = S.alloc(4)
ROWS, T1IMG, WIMG, GPART, GIN, T2IMG, T2IN, YROW = 0, 8192, 20480, 36864, 0, 20480, 0, 20480
GIN_S = 3104

if STAMP:
    a(f'{CLK} {sStamp}')
    nstamp[0] = 1
a(f'''
s_setprio 3
s_load_dwordx2 {sX[0:2]}, s[0:1], 0
s_load_dwordx2 {sWr[0:2]}, s[0:1], 80
s_load_dwordx2 {sWi[0:2]}, s[0:1], 88
s_load_dwordx2 {sGw}, s[0:1], 96
s_load_dwordx2 {sOut[0:2]}, s[0:1], 104
s_mov_b32 {sX[2]}, 0x200000
s_mov_b32 {sX[3]}, 0x20000
s_mov_b32 {sOut[2]}, 0x200000
s_mov_b32 {sOut[3]}, 0x20000
s_mov_b32 {sWr[2]}, 1052672
s_mov_b32 {sWr[3]}, 0x20000
s_mov_b32 {sWi[2]}, 1052672
s_mov_b32 {sWi[3]}, 0x20000
''')
for i in range(1, 8): a(f's_mov_b32 {sOff[i]}, {i*262144}')
XU = V.alloc(12, 4); X = [XU[s + s // 3] for s in range(8)]
GW = V.alloc(1); vT4 = V.alloc(1); vXo = V.alloc(1)
WR = V.alloc(8, 4); WI = V.alloc(8, 4); vWo = V.alloc(1)
l15 = V.alloc(1); vg = V.alloc(1); vlane = V.alloc(1)
a(f'''
s_lshl_b32 {sT}, {sIdx}, 10
v_lshlrev_b32 {vT4}, 2, v0
v_add_u32 {vXo}, {sT}, {vT4}
s_lshr_b32 {sGrp}, s2, 3
s_lshr_b32 {sP1}, {sW8}, 1
s_sub_u32 {sT}, 0, {sP1}
s_cmp_eq_u32 {sW8}, 1
s_cselect_b32 {sT}, 4, {sT}
s_bitcmp1_b32 {sW8}, 0
s_cselect_b32 {sP1}, {sT}, {sP1}
v_lshlrev_b32 {vWo}, 3, v0
v_add_u32 {vWo}, {sP1}, {vWo}
v_and_b32 {vWo}, 2047, {vWo}
v_mul_u32_u24 {vWo}, 514, {vWo}
s_mul_i32 {sT}, {sGrp}, 24
s_cmp_ge_u32 {sGrp}, 22
s_cmov_b32 {sT}, 0x40000000
v_add_u32 {vWo}, {sT}, {vWo}
v_and_b32 {vWo}, -4, {vWo}
v_and_b32 {vlane}, 63, v0
v_and_b32 {l15}, 15, v0
v_bfe_u32 {vg}, v0, 4, 2
s_waitcnt lgkmcnt(0)
''')
if STAMP: a(f'v_writelane_b32 v255, {sStamp[0]}, 0')
for s1 in range(8):
    a(f'buffer_load_dword {X[s1]}, {vXo}, {sX}, {sOff[s1] if s1 else 0} offen')
a(f's_load_dword {sE}, {sWS[0:2]}, 0')
a(f'global_load_dword {GW}, {vT4}, {sGw}')
a(f'''
buffer_load_dwordx4 {WR[0:4]}, {vWo}, {sWr}, 0 offen
buffer_load_dwordx3 {WR[4:7]}, {vWo}, {sWr}, 0 offen offset:16
buffer_load_dwordx4 {WI[0:4]}, {vWo}, {sWi}, 0 offen
buffer_load_dwordx3 {WI[4:7]}, {vWo}, {sWi}, 0 offen offset:16
''')
stamp('f')

a(DELAY(3))
fl = V.alloc(1); fg = V.alloc(1); f1 = V.alloc(1); fb = V.alloc(1)
tc = V.alloc(8, 2); ts = V.alloc(8, 2); rv = V.alloc(8, 2)
B1re = [V.alloc(4, 4) for _ in range(2)]; B1im = [V.alloc(4, 4) for _ in range(2)]
TWc = [V.alloc(4, 2) for _ in range(2)]; TWs = [V.alloc(4, 2) for _ in range(2)]
M1 = V.alloc(4, 4); M2 = V.alloc(4, 4); M3 = V.alloc(4, 4); M4 = V.alloc(4, 4); MN1 = V.alloc(4, 4); MN2 = V.alloc(4, 4)
aTk = [[V.alloc(1) for j in range(2)] for cb in range(2)]; aNy = V.alloc(1); aTr = V.alloc(1); aRd = V.alloc(1)
vSt = V.alloc(1); vSt3 = V.alloc(1)
a(f'''
v_cvt_f32_u32 {fl}, {l15}
v_cvt_f32_u32 {fg}, {vg}
v_mul_f32 {fg}, 4.0, {fg}
v_mul_f32 {f1}, {f2u(1/32)}, {fl}
v_mul_f32 {fb}, {f1}, {fg}
''')
for e in range(8):
    k = 16 * (e >> 2) + (e & 3)
    a(f'v_fmamk_f32 {rv[e]}, {f1}, {f2u(float(k))}, {fb}')
for e in range(8):
    a(f'v_cos_f32 {tc[e]}, {rv[e]}'); a(f'v_sin_f32 {ts[e]}, {rv[e]}')
for i in range(4):
    a(f'v_cvt_pk_bf16_f32 {B1re[0][i]}, {tc[2*i]}, {tc[2*i+1]}')
    a(f'v_cvt_pk_bf16_f32 {B1im[0][i]}, -{ts[2*i]}, -{ts[2*i+1]}')
for i in range(4):
    a(f'v_xor_b32 {B1re[1][i]}, 0x80000000, {B1re[0][i]}')
    a(f'v_xor_b32 {B1im[1][i]}, 0x80000000, {B1im[0][i]}')
for cb in range(2):
    if cb == 0: a(f'v_mul_f32 {f1}, {f2u(1/512)}, {fl}')
    else: a(f'v_add_f32 {f1}, {f2u(16/512)}, {f1}')
    a(f'v_mul_f32 {fb}, {f1}, {fg}')
    for r in range(4): a(f'v_fmamk_f32 {rv[4*cb+r]}, {f1}, {f2u(float(r))}, {fb}')
for cb in range(2):
    for r in range(4):
        a(f'v_cos_f32 {TWc[cb][r]}, {rv[4*cb+r]}'); a(f'v_sin_f32 {TWs[cb][r]}, {rv[4*cb+r]}')
a(f'''
v_lshrrev_b32 {f1}, 1, {l15}
v_and_b32 {fb}, 1, {l15}
v_cvt_f32_u32 {f1}, {f1}
v_cvt_f32_u32 {fb}, {fb}
v_mul_f32 {f1}, {f2u(1/16)}, {f1}
v_mul_f32 {fb}, 0.25, {fb} ; placeholder
''') if False else None
a(f'''
v_lshrrev_b32 {f1}, 1, {l15}
v_and_b32 {fb}, 1, {l15}
v_cvt_f32_u32 {f1}, {f1}
v_cvt_f32_u32 {fb}, {fb}
v_mul_f32 {f1}, {f2u(1/16)}, {f1}
v_mul_f32 {fb}, {f2u(0.25)}, {fb}
v_fmac_f32 {fb}, {f1}, {fg}
s_cmp_lg_u32 {sWave}, 0
s_cselect_b32 {sM}, -1, 0
''')
for r in range(4): a(f'v_fmamk_f32 {rv[r]}, {f1}, {f2u(float(r))}, {fb}')
for r in range(4):
    a(f'v_cos_f32 {tc[r]}, {rv[r]}'); a(f'v_sin_f32 {ts[r]}, {rv[r]}')
for r in range(4):
    a(f'v_cvt_pk_bf16_f32 {M1[r]}, {tc[r]}, {ts[r]}')
    a(f'v_cvt_pk_bf16_f32 {M2[r]}, {ts[r]}, -{tc[r]}')
    a(f'v_cvt_pk_bf16_f32 {M4[r]}, -{ts[r]}, {tc[r]}')
for r in range(4):
    a(f'v_and_b32 {M2[r]}, {sM}, {M2[r]}')
    a(f'v_and_b32 {M3[r]}, {sM}, {M1[r]}')
    a(f'v_bfi_b32 {M4[r]}, {sM}, {M4[r]}, {M1[r]}')
a(f'''
s_cmp_lg_u32 {sWave}, 0
s_cselect_b32 {sT}, 0x11, 0x01
s_cselect_b32 {sT2}, 0xc4, 0x10
v_lshlrev_b32 {f1}, 1, {l15}
v_bfe_i32 {tc[0]}, {sT}, {f1}, 2
v_bfe_i32 {tc[1]}, {sT2}, {f1}, 2
v_cvt_f32_i32 {tc[0]}, {tc[0]}
v_cvt_f32_i32 {tc[1]}, {tc[1]}
v_lshrrev_b32 {MN1[0]}, 16, {tc[0]}
v_lshrrev_b32 {MN2[0]}, 16, {tc[1]}
v_xor_b32 {MN1[1]}, 0x8000, {MN1[0]}
v_xor_b32 {MN2[1]}, 0x8000, {MN2[0]}
v_mov_b32 {MN1[2]}, {MN1[0]}
v_mov_b32 {MN2[2]}, {MN2[0]}
v_mov_b32 {MN1[3]}, {MN1[1]}
v_mov_b32 {MN2[3]}, {MN2[1]}
''')
a(f'''
s_mul_i32 {sT}, {sWave}, 2816
s_add_u32 {sT}, {sT}, {T1IMG}
v_lshl_add_u32 {f1}, {vg}, 6, {l15}
''')
for cb in range(2):
    for j in range(2):
        k0 = 16 * cb + 32 * j
        a(f'v_add_u32 {fb}, {k0}, {f1}')
        a(f'v_mul_u32_u24 {aTk[cb][j]}, 171, {fb}')
        a(f'v_lshrrev_b32 {aTk[cb][j]}, 9, {aTk[cb][j]}')
        a(f'v_add_u32 {fb}, {fb}, {aTk[cb][j]}')
        a(f'v_lshl_add_u32 {aTk[cb][j]}, {fb}, 2, {sT}')
a(f'''
v_min_u32 {aNy}, 1, {vlane}
v_add_u32 {aNy}, 341, {aNy}
v_lshl_add_u32 {aNy}, {aNy}, 2, {sT}
s_lshl_b32 {sT}, {sWave}, 11
v_lshl_add_u32 {aTr}, {vlane}, 3, {sT}
v_lshlrev_b32 {aRd}, 4, v0
s_mul_i32 {sT}, {sIdx}, {XT_S}
s_add_u32 {sK[0]}, {sT}, {XT_B}
s_add_u32 {sK[1]}, {sK[0]}, 4096
s_add_u32 {sK[2]}, {sK[0]}, 8192
s_mov_b32 {sH[0]}, {f2u(math.sqrt(0.5))}
s_waitcnt lgkmcnt(0)
s_mul_i32 {sTag}, {sE}, 0x9E3779B1
s_add_u32 {sTag}, {sTag}, 0x7F4A7C15
v_mov_b32 {XU[3]}, {sTag}
v_mov_b32 {XU[7]}, {sTag}
v_mov_b32 {XU[11]}, {sTag}
v_mov_b32 {XU[10]}, 0
; third T1 store: waves 0..2 only (wave 3 is pushed out of range)
s_cmp_eq_u32 {sWave}, 3
s_cselect_b32 {sT}, 0x40000000, 0
v_add_u32 {vSt3}, {sT}, {aRd}
''')
TU = V.alloc(12, 4)
for i in range(3): a(f'v_mov_b32 {TU[4*i+3]}, {sTag}')
stamp('f')

P = [V.alloc(2, 2) for _ in range(8)]; A_ = [V.alloc(2, 2) for _ in range(8)]
for s in (0, 4, 2, 6, 1, 5, 3, 7):
    a(f'v_lshlrev_b32 {P[s][0]}, 16, {X[s]}')
    a(f'v_and_b32 {P[s][1]}, 0xffff0000, {X[s]}')
for u in range(3):
    a(f'buffer_store_dwordx4 {XU[4*u:4*u+4]}, {aRd}, {sWS}, {sK[u]} offen sc1')
NEG1 = 'neg_lo:[0,1] neg_hi:[0,1]'
if OPT.get('only') == 'conv':
    stamp_flush(); a('s_endpgm')
for i in (0, 2, 1, 3):
    a(f'v_pk_add_f32 {A_[i]}, {P[i]}, {P[i+4]}')
    a(f'v_pk_add_f32 {A_[i+4]}, {P[i]}, {P[i+4]} {NEG1}')
aa, bb = A_[:4], A_[4:]
c0, c1, Re2, Im2, t1, t2, Ra, Rb = P
O = V.alloc(8)
def row_out(q, src):
    a(f'v_cvt_pk_bf16_f32 {O[q]}, {src[0]}, {src[1]}')
    a(f'ds_write_b32 {vT4}, {O[q]} offset:{ROWS + q*1024}')
a(f'''
v_pk_add_f32 {c0}, {aa[0]}, {aa[2]}
v_pk_add_f32 {c1}, {aa[1]}, {aa[3]}
v_pk_add_f32 {Re2}, {aa[0]}, {aa[2]} {NEG1}
v_pk_add_f32 {Im2}, {aa[3]}, {aa[1]} {NEG1}
v_pk_add_f32 {t1}, {bb[1]}, {bb[3]} {NEG1}
v_pk_add_f32 {t2}, {bb[1]}, {bb[3]}
v_pk_add_f32 {Ra}, {c0}, {c1}
v_pk_add_f32 {Rb}, {c0}, {c1} {NEG1}
''')
row_out(4, Re2); row_out(5, Im2)
a(f'''
v_pk_fma_f32 {aa[0]}, {t1}, {sH}, {bb[0]} op_sel_hi:[1,0,1]
v_pk_fma_f32 {aa[1]}, {t2}, {sH}, {bb[2]} op_sel_hi:[1,0,1] neg_lo:[1,0,1] neg_hi:[1,0,1]
v_pk_fma_f32 {aa[2]}, {t1}, {sH}, {bb[0]} op_sel_hi:[1,0,1] neg_lo:[1,0,0] neg_hi:[1,0,0]
v_pk_fma_f32 {aa[3]}, {t2}, {sH}, {bb[2]} op_sel_hi:[1,0,1] neg_lo:[1,0,0] neg_hi:[1,0,0]
''')
row_out(0, Ra); row_out(1, Rb); row_out(2, aa[0]); row_out(3, aa[1]); row_out(6, aa[2]); row_out(7, aa[3])
a.barrier()
stamp('f')
V.release(*P, *A_, O)
AF = [V.alloc(4, 4) for _ in range(2)]
for q in range(2):
    for i in range(2):
        a(f'ds_read_b64_tr_b16 {AF[q][2*i:2*i+2]}, {aTr} offset:{ROWS + q*1024 + i*512}')
Dre = [[V.alloc(4, 4) for cb in range(2)] for q in range(2)]; Dim = [[V.alloc(4, 4) for cb in range(2)] for q in range(2)]
for q in range(2):
    for cb in range(2):
        a(mf16(Dre[q][cb], AF[q], B1re[cb], 0)); a(mf16(Dim[q][cb], AF[q], B1im[cb], 0))
tre = V.alloc(4, 2); tim = V.alloc(4, 2)
BQ = [[V.alloc(4, 4) for cb in range(2)] for q in range(2)]
F = [[V.alloc(4, 4) for cb in range(2)] for s in range(2)]; FN = V.alloc(4, 4)
MM = [[M1, M2], [M3, M4]]
for q in range(2):
    for cb in range(2):
        emit(twiddle(Dre[q][cb], Dim[q][cb], TWc[cb], TWs[cb], tre, tim, BQ[q][cb], -1))
        for s in range(2):
            a(mf16(F[s][cb], MM[s][q], BQ[q][cb], 0 if q == 0 else F[s][cb]))
        if cb == 0: a(mf16(FN, (MN1, MN2)[q], BQ[q][0], 0 if q == 0 else FN))
o2 = V.alloc(10)
a(f'v_cvt_pk_bf16_f32 {o2[8]}, {FN[0]}, {FN[1]}'); a(f'v_cvt_pk_bf16_f32 {o2[9]}, {FN[2]}, {FN[3]}')
a(f'ds_write_b32 {aNy}, {o2[8]}'); a(f'ds_write_b32 {aNy}, {o2[9]} offset:1408')
for cb in range(2):
    for s in range(2):
        for j in range(2):
            o = o2[4*cb + 2*s + j]
            a(f'v_cvt_pk_bf16_f32 {o}, {F[s][cb][2*j]}, {F[s][cb][2*j+1]}')
            a(f'ds_write_b32 {aTk[cb][j]}, {o} offset:{1408*s}')
a(f'''
s_mul_i32 {sT}, {sIdx}, {T1_S}
s_add_u32 {sK[0]}, {sT}, {T1_B}
s_add_u32 {sK[1]}, {sK[0]}, 4096
s_add_u32 {sK[2]}, {sK[0]}, 8192
''')
a.barrier()
for i in range(3): a(f'ds_read_b96 {TU[4*i:4*i+3]}, {aRd} offset:{T1IMG + 4096*i}')
for i in range(3): a(f'buffer_store_dwordx4 {TU[4*i:4*i+4]}, {aRd if i < 2 else vSt3}, {sWS}, {sK[i]} offen sc1')
stamp('f')
V.release(*AF, *Dre[0], *Dre[1], *Dim[0], *Dim[1], *BQ[0], *BQ[1], *F[0], *F[1], FN, o2)
V.release(*B1re, *B1im, *TWc, *TWs, M1, M2, M3, M4, MN1, MN2, *aTk[0], *aTk[1], aNy, aTr)

G = V.alloc(8)
for s in range(8): a(f'v_dot2_f32_bf16 {G[s]}, {X[s]}, {GW}, 0')
gt = V.alloc(4)
for i in range(4):
    a(f'v_add_f32_dpp {gt[i]}, {G[2*i]}, {G[2*i]} row_ror:4 row_mask:0xf bank_mask:0x5')
    a(f'v_add_f32_dpp {gt[i]}, {G[2*i+1]}, {G[2*i+1]} row_ror:4 row_mask:0xf bank_mask:0xa')
for i in range(2):
    a(f'v_add_f32_dpp {G[i]}, {gt[2*i]}, {gt[2*i]} row_ror:8 row_mask:0xf bank_mask:0x3')
    a(f'v_add_f32_dpp {G[i]}, {gt[2*i+1]}, {gt[2*i+1]} row_ror:8 row_mask:0xf bank_mask:0xc')
a(f'''
v_permlane16_swap_b32 {G[0]}, {G[1]}
v_add_f32 {G[0]}, {G[0]}, {G[1]}
v_mov_b32 {G[1]}, {G[0]}
v_permlane32_swap_b32 {G[0]}, {G[1]}
v_add_f32 {G[0]}, {G[0]}, {G[1]}
v_add_f32_dpp {G[0]}, {G[0]}, {G[0]} quad_perm:[1,0,3,2] row_mask:0xf bank_mask:0xf
v_add_f32_dpp {G[0]}, {G[0]}, {G[0]} quad_perm:[2,3,0,1] row_mask:0xf bank_mask:0xf
v_and_b32 {G[2]}, 28, v0
s_lshl_b32 {sT}, {sWave}, 5
v_add_u32 {G[2]}, {sT}, {G[2]}
ds_write_b32 {G[2]}, {G[0]} offset:{GPART}
''')
CW = V.alloc(16, 4)
a(f'''
s_waitcnt vmcnt(6)
s_cmp_ge_u32 {sGrp}, 22
s_cbranch_scc1 L_now2
s_and_b32 {sT}, {sP1}, 1
s_lshl_b32 {sT}, {sT}, 4
s_mov_b32 {sT2}, 0x05040100
s_mov_b32 {sM}, 0x07060302
''')
for i in range(6):
    a(f'v_alignbit_b32 {WR[i]}, {WR[i+1]}, {WR[i]}, {sT}')
    a(f'v_alignbit_b32 {WI[i]}, {WI[i+1]}, {WI[i]}, {sT}')
for c in range(12):
    a(f'v_perm_b32 {CW[4*(c//3) + c%3]}, {WI[c//2]}, {WR[c//2]}, {sM if c & 1 else sT2}')
for u in range(4): a(f'ds_write_b96 {aRd}, {CW[4*u:4*u+3]} offset:{WIMG + 4096*u}')
a('L_now2:')
a('s_waitcnt lgkmcnt(0)')
a('s_barrier')
stamp('f')
V.release(WR, WI, vWo, GW, gt)
a(f'''
v_and_b32 {G[2]}, 7, v0
v_lshlrev_b32 {G[2]}, 2, {G[2]}
''')
for i in range(4): a(f'ds_read_b32 {G[4+i]}, {G[2]} offset:{GPART + 32*i}')
a(f'''
v_add_f32 {G[4]}, {G[4]}, {G[5]}
v_add_f32 {G[6]}, {G[6]}, {G[7]}
v_add_f32 {G[4]}, {G[4]}, {G[6]}
v_mul_f32 {G[4]}, {f2u(-1/math.log(2))}, {G[4]}
v_exp_f32 {G[4]}, {G[4]}
v_add_f32 {G[4]}, 1.0, {G[4]}
v_rcp_f32 {G[4]}, {G[4]}
v_sub_f32 {G[5]}, 1.0, {G[4]}
''')
for s in range(8):
    a(f'v_readlane_b32 {sG[2*s]}, {G[4]}, {s}'); a(f'v_readlane_b32 {sG[2*s+1]}, {G[5]}, {s}')
V.release(G)
a(f'''
s_cmp_ge_u32 {sGrp}, 22
s_cbranch_scc1 L_p3
''')

p2start = nstamp[0]
WQ = CW
aWq = V.alloc(1)
a(f'''
v_lshl_add_u32 {aWq}, {vg}, 6, {l15}
v_lshlrev_b32 {aWq}, 4, {aWq}
s_lshl_b32 {sT}, {sWave}, 12
v_add_u32 {aWq}, {sT}, {aWq}
''')
for r in range(4): a(f'ds_read_b96 {WQ[4*r:4*r+3]}, {aWq} offset:{WIMG + 256*r}')
S1re = V.alloc(4, 4); S1im = V.alloc(4, 4); S2re = V.alloc(4, 4); S2im = V.alloc(4, 4)
S3re = V.alloc(4, 4); S3im = V.alloc(4, 4); S4re = V.alloc(4, 4); S4im = V.alloc(4, 4)
T1c = V.alloc(4, 2); T1s = V.alloc(4, 2); T2c = V.alloc(4, 2); T2s = V.alloc(4, 2)
Wc = [V.alloc(4, 2) for _ in range(3)]; Ws = [V.alloc(4, 2) for _ in range(3)]
fq = V.alloc(1); fp1 = V.alloc(1)
a(f'''
v_cvt_f32_i32 {fp1}, {sP1}
v_fmamk_f32 {fq}, {fl}, {f2u(8.0)}, {fp1}
''')
def angles(dst, f, base, n=4):
    for r in range(n): a(f'v_fmamk_f32 {dst[r]}, {f}, {f2u(float(r))}, {base}')
def cossin(c, s, ang, n=4):
    for r in range(n):
        a(f'v_cos_f32 {c[r]}, {ang[r]}'); a(f'v_sin_f32 {s[r]}, {ang[r]}')
a(f'v_mul_f32 {f1}, {f2u(1/128)}, {fq}'); a(f'v_mul_f32 {fb}, {f1}, {fg}')
angles(rv, f1, fb)
for r in range(4): a(f'v_mul_f32 {rv[4+r]}, {f2u(1/16)}, {rv[r]}')
cossin(tc, ts, rv); cossin(T1c, T1s, rv[4:8])
for r in range(4):
    a(f'v_cvt_pk_bf16_f32 {S1re[r]}, {tc[r]}, {ts[r]}'); a(f'v_cvt_pk_bf16_f32 {S1im[r]}, -{ts[r]}, {tc[r]}')
a(f'v_mul_f32 {f1}, {f2u(1/16)}, {fl}'); a(f'v_mul_f32 {fb}, {f1}, {fg}')
angles(rv, f1, fb); cossin(tc, ts, rv)
for r in range(4):
    a(f'v_cvt_pk_bf16_f32 {S2re[r]}, {tc[r]}, {ts[r]}'); a(f'v_cvt_pk_bf16_f32 {S2im[r]}, -{ts[r]}, {tc[r]}')
    a(f'v_cvt_pk_bf16_f32 {S3re[r]}, {tc[r]}, -{ts[r]}'); a(f'v_cvt_pk_bf16_f32 {S3im[r]}, {ts[r]}, {tc[r]}')
a(f'''
v_fmamk_f32 {fb}, {fg}, {f2u(8.0)}, {fp1}
v_mul_f32 {fb}, {fb}, {fl}
v_mul_f32 {fb}, {f2u(1/128)}, {fb}
''')
angles(rv, f1, fb)
for r in range(4): a(f'v_mul_f32 {rv[4+r]}, {f2u(1/16)}, {rv[r]}')
cossin(tc, ts, rv); cossin(T2c, T2s, rv[4:8])
for r in range(4):
    a(f'v_cvt_pk_bf16_f32 {S4re[r]}, {tc[r]}, -{ts[r]}'); a(f'v_cvt_pk_bf16_f32 {S4im[r]}, {ts[r]}, {tc[r]}')
for k in range(3):
    for r in range(4):
        a(f'v_lshlrev_b32 {Wc[k][r]}, 16, {WQ[4*r+k]}'); a(f'v_and_b32 {Ws[k][r]}, 0xffff0000, {WQ[4*r+k]}')
a(f'''
s_or_b32 {sT}, {sGrp}, {sWave}
s_cmp_eq_u32 {sT}, 0
s_cselect_b32 {sH[1]}, 0.5, 1.0
''')
for h in (0, 2):
    a(f'v_pk_mul_f32 {Wc[0][h:h+2]}, {Wc[0][h:h+2]}, {sH} op_sel:[0,1]')
    a(f'v_pk_mul_f32 {Ws[0][h:h+2]}, {Ws[0][h:h+2]}, {sH} op_sel:[0,1]')
aG = V.alloc(1); aGw = V.alloc(1); aGr = V.alloc(1); aUw = V.alloc(1); aUr = V.alloc(1)
L = CW
vt = V.alloc(1); vt2 = V.alloc(1)
a(f'''
v_bfe_u32 {vt}, v0, 2, 4
s_lshl_b32 {sT}, {sWave}, 6
v_add_u32 {vt}, {sT}, {vt}
v_mul_u32_u24 {aG}, {T1_S}, {vt}
v_and_b32 {vt}, 3, v0
v_lshl_add_u32 {aG}, {vt}, 4, {aG}
s_mul_i32 {sT}, {sW8}, 22
s_add_u32 {sT}, {sT}, {sGrp}
s_lshl_b32 {sK[0]}, {sT}, 6
s_add_u32 {sK[0]}, {sK[0]}, {T1_B}
s_add_u32 {sK[1]}, {sK[0]}, {16*T1_S}
s_add_u32 {sK[2]}, {sK[0]}, {32*T1_S}
s_add_u32 {sK[3]}, {sK[0]}, {48*T1_S}
s_mul_i32 {sE}, {sT}, {T2_S}
s_add_u32 {sE}, {sE}, {T2_B}
v_mul_u32_u24 {aGw}, {GIN_S}, {vt}
v_lshrrev_b32 {vt2}, 2, v0
v_lshl_add_u32 {aGw}, {vt2}, 4, {aGw}
s_mul_i32 {sT}, {sWave}, {GIN_S}
v_lshl_add_u32 {aGr}, {vlane}, 4, {sT}
v_lshrrev_b32 {aUw}, 1, {l15}
v_add_u32 {aUw}, {sWave}, {aUw}
v_and_b32 {aUw}, 3, {aUw}
v_lshlrev_b32 {aUw}, 4, {aUw}
v_lshl_add_u32 {aUr}, {vg}, 6, {l15}
v_lshl_add_u32 {aUw}, {aUr}, 6, {aUw}
v_lshrrev_b32 {aUr}, 3, v0
v_add_u32 {aUr}, {aUr}, v0
v_and_b32 {aUr}, 3, {aUr}
v_lshlrev_b32 {aUr}, 4, {aUr}
v_lshl_add_u32 {aUr}, {vt2}, 6, {aUr}
''')
UU = V.alloc(16, 4)
for r in range(4): a(f'v_mov_b32 {UU[4*r+3]}, {sTag}')
stamp('f')
loads = [f'buffer_load_dwordx4 {L[4*i:4*i+4]}, {aG}, {sWS}, {sK[i]} offen sc1' for i in range(4)]
a('s_waitcnt vmcnt(0)')
emit(loads)
check_retry(loads, [L[4*i+3] for i in range(4)], vt, vt2)
stamp('f')
for i in range(4):
    for j in range(i + 1, 4): a(f'v_swap_b32 {L[4*i+j]}, {L[4*j+i]}')
for k in range(3): a(f'ds_write_b128 {aGw}, {L[4*k:4*k+4]} offset:{GIN + 1024*k}')
a.barrier()
for k in range(3): a(f'ds_read_b128 {L[4*k:4*k+4]}, {aGr} offset:{GIN + 1024*k}')
D1 = [V.alloc(4, 4) for _ in range(3)]; D2 = [V.alloc(4, 4) for _ in range(3)]
Z = [L[4*k:4*k+4] for k in range(3)]
for k in range(3):
    a(mf16(D1[k], Z[k], S1re, 0)); a(mf16(D2[k], Z[k], S1im, 0))
for k in range(3):
    emit(twiddle(D1[k], D2[k], T1c, T1s, tre, tim, Z[k], -1))
    a(mf16(D1[k], S2re, Z[k], 0)); a(mf16(D2[k], S2im, Z[k], 0))
for k in range(3):
    emit(twiddle(D1[k], D2[k], Wc[k], Ws[k], tre, tim, Z[k], +1))
    a(mf16(D1[k], Z[k], S3re, 0)); a(mf16(D2[k], Z[k], S3im, 0))
for k in range(3):
    emit(twiddle(D1[k], D2[k], T2c, T2s, tre, tim, Z[k], +1))
    a(mf16(D1[k], S4re, Z[k], 0)); a(mf16(D2[k], S4im, Z[k], 0))
for k in range(3):
    for r in range(4): a(f'v_cvt_pk_bf16_f32 {UU[4*r+k]}, {D1[k][r]}, {D2[k][r]}')
for r in range(4): a(f'ds_write_b128 {aUw}, {UU[4*r:4*r+4]} offset:{T2IMG + 1024*r}')
a(f'''
s_add_u32 {sK[1]}, {sE}, 4096
s_add_u32 {sK[2]}, {sE}, 8192
s_add_u32 {sK[3]}, {sE}, 12288
''')
a.barrier()
for i in range(4): a(f'ds_read_b128 {UU[4*i:4*i+4]}, {aUr} offset:{T2IMG + 4096*i}')
for i in range(4): a(f'buffer_store_dwordx4 {UU[4*i:4*i+4]}, {aRd}, {sWS}, {sK[i] if i else sE} offen sc1')
stamp('f')
a('L_p3:')
V.release(S1re, S1im, S2re, S2im, S3re, S3im, S4re, S4im, T1c, T1s, T2c, T2s, *Wc, *Ws, fq, fp1, aG, aGw, aGr, aUw, aUr, aWq, *D1, *D2, UU)
p2end = nstamp[0]

B1 = [[V.alloc(4, 4) for c in range(2)] for q in range(2)]
T3c = [V.alloc(4, 2) for _ in range(2)]; T3s = [V.alloc(4, 2) for _ in range(2)]
B2 = [[V.alloc(4, 4) for db in range(2)] for blk in range(2)]
AN = [V.alloc(4, 4) for q in range(2)]
NB = V.alloc(4, 4)
msk = V.alloc(2); dl = V.alloc(1)
a(f'''
s_cmp_lg_u32 {sWave}, 0
s_cselect_b32 {sM}, -1, 0
s_cselect_b32 {sT}, {f2u(0.25)}, 0
v_and_b32 {fb}, 1, {vg}
v_cvt_f32_u32 {fb}, {fb}
v_mul_f32 {f1}, {f2u(1/16)}, {fl}
v_mul_f32 {fb}, 4.0, {fb}
v_mul_f32 {fb}, {fb}, {f1}
v_bfe_i32 {msk[1]}, {vg}, 1, 1
v_not_b32 {msk[0]}, {msk[1]}
v_and_b32 {dl}, 0x80000000, {msk[1]}
v_or_b32 {dl}, {sT}, {dl}
v_or_b32 {msk[0]}, {sM}, {msk[0]}
v_or_b32 {msk[1]}, {sM}, {msk[1]}
''')
angles(rv, f1, fb)
for r in range(4): a(f'v_add_f32 {rv[4+r]}, {rv[r]}, {dl}')
cossin(tc, ts, rv, 8)
for q in range(2):
    for r in range(4):
        a(f'v_cvt_pk_bf16_f32 {B1[q][0][r]}, {tc[4*q+r]}, -{ts[4*q+r]}')
        a(f'v_cvt_pk_bf16_f32 {B1[q][1][r]}, {ts[4*q+r]}, {tc[4*q+r]}')
for q in range(2):
    for r in range(4):
        a(f'v_and_b32 {B1[q][0][r]}, {msk[q]}, {B1[q][0][r]}')
        a(f'v_and_b32 {B1[q][1][r]}, {msk[q]}, {B1[q][1][r]}')
a(f'v_mul_f32 {f1}, {f2u(1/512)}, {fl}'); a(f'v_mul_f32 {fb}, {f1}, {fg}')
angles(rv, f1, fb)
for r in range(4): a(f'v_fmamk_f32 {rv[4+r]}, {f1}, {f2u(16.0)}, {rv[r]}')
for blk in range(2): cossin(T3c[blk], T3s[blk], rv[4*blk:4*blk+4])
a(f's_mov_b32 {sH[1]}, {f2u(2.0**-19)}')
for blk in range(2):
    for h in (0, 2):
        a(f'v_pk_mul_f32 {T3c[blk][h:h+2]}, {T3c[blk][h:h+2]}, {sH} op_sel:[0,1]')
        a(f'v_pk_mul_f32 {T3s[blk][h:h+2]}, {T3s[blk][h:h+2]}, {sH} op_sel:[0,1]')
a(f'v_mul_f32 {f1}, {f2u(1/32)}, {fl}'); a(f'v_mul_f32 {fb}, {f1}, {fg}')
angles(rv, f1, fb); cossin(tc, ts, rv)
a(f'v_bfe_i32 {dl}, {l15}, 0, 1'); a(f'v_and_b32 {dl}, 0x80008000, {dl}')
for r in range(4): a(f'v_cvt_pk_bf16_f32 {B2[0][0][r]}, {tc[r]}, -{ts[r]}')
for r in range(4):
    a(f'v_xor_b32 {B2[1][0][r]}, {dl}, {B2[0][0][r]}')
    if r & 1: a(f'v_xor_b32 {B2[0][1][r]}, 0x80008000, {B2[0][0][r]}')
    else: a(f'v_mov_b32 {B2[0][1][r]}, {B2[0][0][r]}')
for r in range(4): a(f'v_xor_b32 {B2[1][1][r]}, {dl}, {B2[0][1][r]}')
a(f'''
s_cmp_lg_u32 {sWave}, 0
s_cselect_b32 {sK[0]}, 0x3580, 0
s_cselect_b32 {sK[1]}, 0xb5800000, 0
s_mov_b32 {sK[2]}, 0x3580
s_cmov_b32 {sK[2]}, 0x35800000
v_cmp_eq_u32 vcc, 0, {vg}
v_xor_b32 {tc[0]}, 0x3580, {dl}
v_xor_b32 {tc[1]}, {sK[0]}, {dl}
v_xor_b32 {tc[2]}, {sK[1]}, {dl}
v_xor_b32 {tc[3]}, {sK[2]}, {dl}
v_cndmask_b32 {AN[0][0]}, 0, {tc[0]}, vcc
v_cndmask_b32 {AN[0][1]}, 0, {tc[1]}, vcc
v_cndmask_b32 {AN[1][0]}, 0, {tc[2]}, vcc
v_cndmask_b32 {AN[1][1]}, 0, {tc[3]}, vcc
v_mov_b32 {AN[0][2]}, 0
v_mov_b32 {AN[0][3]}, 0
v_mov_b32 {AN[1][2]}, 0
v_mov_b32 {AN[1][3]}, 0
v_mov_b32 {NB[2]}, 0
v_mov_b32 {NB[3]}, 0
''')
g1 = V.alloc(1); g3 = V.alloc(1); w3 = V.alloc(1); aA = V.alloc(1); aF = V.alloc(3); aN = V.alloc(1); aYw = V.alloc(1); aYr = V.alloc(1)
a(f'''
v_lshrrev_b32 {vt}, 2, v0
v_mul_u32_u24 {g1}, {T2_S}, {vt}
v_and_b32 {vt2}, 3, v0
v_lshl_add_u32 {g1}, {vt2}, 4, {g1}
v_add_u32 {w3}, 512, v0
v_min_u32 {w3}, 703, {w3}
v_lshrrev_b32 {vt}, 2, {w3}
v_mul_u32_u24 {g3}, {T2_S}, {vt}
v_and_b32 {vt2}, 3, {w3}
v_lshl_add_u32 {g3}, {vt2}, 4, {g3}
v_lshlrev_b32 {w3}, 4, {w3}
s_lshl_b32 {sK[0]}, {sIdx}, 6
s_add_u32 {sK[0]}, {sK[0]}, {T2_B}
s_add_u32 {sK[1]}, {sK[0]}, {64*T2_S}
v_mul_u32_u24 {aA}, {AT_S}, v0
s_lshl_b32 {sK[2]}, {sIdx}, 4
s_add_u32 {sK[2]}, {sK[2]}, {AT_B}
s_add_u32 {sK[3]}, {sK[2]}, 4096
s_add_u32 {sE}, {sK[2]}, 8192
v_and_b32 {vt}, 1, {vg}
v_lshl_add_u32 {vt}, {vt}, 7, {l15}
v_lshrrev_b32 {vt2}, 1, {vg}
v_mul_u32_u24 {vt2}, 1408, {vt2}
s_mul_i32 {sT}, {sWave}, 2816
v_add_u32 {vt2}, {sT}, {vt2}
''')
for j in range(3):
    a(f'v_add_u32 {fb}, {16*j}, {vt}')
    a(f'v_mul_u32_u24 {aF[j]}, 171, {fb}')
    a(f'v_lshrrev_b32 {aF[j]}, 9, {aF[j]}')
    a(f'v_add_u32 {fb}, {fb}, {aF[j]}')
    a(f'v_lshl_add_u32 {aF[j]}, {fb}, 2, {vt2}')
a(f'''
v_mov_b32 {aN}, {sT}
v_bfe_u32 {vt}, {l15}, 1, 2
v_xor_b32 {vt}, {vt}, {vg}
v_lshlrev_b32 {vt}, 4, {vt}
v_lshl_add_u32 {aYw}, {l15}, 6, {vt}
s_lshl_b32 {sT}, {sWave}, 12
v_add_u32 {aYw}, {sT}, {aYw}
v_lshrrev_b32 {vt}, 3, v0
v_xor_b32 {vt}, {vt}, v0
v_and_b32 {vt}, 6, {vt}
v_and_b32 {vt2}, 1, v0
v_or_b32 {vt}, {vt}, {vt2}
v_lshlrev_b32 {vt}, 3, {vt}
v_lshrrev_b32 {vt2}, 3, v0
v_lshl_add_u32 {aYr}, {vt2}, 6, {vt}
''')
L3 = TU
loads = [f'buffer_load_dwordx4 {L3[0:4]}, {g1}, {sWS}, {sK[0]} offen sc1',
         f'buffer_load_dwordx4 {L3[4:8]}, {g1}, {sWS}, {sK[1]} offen sc1',
         f'buffer_load_dwordx4 {L3[8:12]}, {g3}, {sWS}, {sK[0]} offen sc1']
a('s_waitcnt vmcnt(0)')
a(f'''
s_cmp_lt_u32 {sGrp}, 22
s_cbranch_scc1 L_t2go
s_mov_b64 exec, 1
s_mov_b32 {sSpin}, 0
L_canary:
buffer_load_dwordx4 {L3[0:4]}, {g1}, {sWS}, {sK[1]} offen sc1
s_add_u32 {sSpin}, {sSpin}, 1
s_waitcnt vmcnt(0)
v_cmp_ne_u32 vcc, {sTag}, {L3[3]}
s_cbranch_vccz L_canok
s_sleep 4
s_cmp_lt_u32 {sSpin}, {SPIN}
s_cbranch_scc1 L_canary
L_canok:
s_mov_b64 exec, -1
L_t2go:
''')
stamp('f')
emit(loads)
check_retry(loads, [L3[3], L3[7], L3[11]], vt, vt2)
stamp('f')
AU = XU
aloads = [f'buffer_load_dwordx4 {AU[4*u:4*u+4]}, {aA}, {sWS}, {(sK[2], sK[3], sE)[u]} offen sc1' for u in range(3)]
a(f'ds_write_b128 {aRd}, {L3[0:4]} offset:{T2IN}')
a(f'ds_write_b128 {aRd}, {L3[4:8]} offset:{T2IN + 4096}')
a(f'ds_write_b128 {w3}, {L3[8:12]} offset:{T2IN}')
emit(aloads)
a.barrier()
AF = [V.alloc(4, 4) for _ in range(2)]
for blk in range(2):
    for r in range(4):
        off = 16 * blk + 32 * r
        a(f'ds_read_b32 {AF[blk][r]}, {aF[(off % 48) // 16]} offset:{T2IN + 256 * (off // 48)}')
a(f'ds_read_b32 {NB[0]}, {aN} offset:{T2IN + 341*4}')
a(f'ds_read_b32 {NB[1]}, {aN} offset:{T2IN + 341*4 + 1408}')
Dre = [[V.alloc(4, 4) for b in range(2)] for q in range(2)]; Dim = [[V.alloc(4, 4) for b in range(2)] for q in range(2)]
VV = [[V.alloc(4, 4) for b in range(2)] for q in range(2)]
Y = [[V.alloc(4, 4) for db in range(2)] for q in range(2)]
for blk in range(2):
    for q in range(2):
        a(mf16(Dre[q][blk], AF[blk], B1[q][0], 0)); a(mf16(Dim[q][blk], AF[blk], B1[q][1], 0))
for q in range(2):
    for db in range(2): a(mf16(Y[q][db], AN[q], NB, 0))
for q in range(2):
    for blk in range(2):
        emit(twiddle(Dre[q][blk], Dim[q][blk], T3c[blk], T3s[blk], tre, tim, VV[q][blk], +1))
        for db in range(2): a(mf16(Y[q][db], VV[q][blk], B2[blk][db], Y[q][db]))
    if q == 1:
        for db in range(2): a(f'ds_write_b128 {aYw}, {Y[0][db]} offset:{YROW + 1024*db}')
for db in range(2): a(f'ds_write_b128 {aYw}, {Y[1][db]} offset:{YROW + 2048 + 1024*db}')
stamp('f')
if OPT.get('only') == 'fft': a('s_waitcnt vmcnt(0)')
else: check_retry(aloads, [AU[3], AU[7], AU[11]], vt, vt2)
stamp('f')
V.release(*Dre[0], *Dre[1], *Dim[0], *Dim[1], *VV[0], *VV[1], *AF)
GA = [V.alloc(2, 2) for _ in range(8)]
for s in range(8):
    a(f'v_lshlrev_b32 {GA[s][0]}, 16, {X[s]}'); a(f'v_and_b32 {GA[s][1]}, 0xffff0000, {X[s]}')
a.barrier()
Rr = [V.alloc(2, 2) for _ in range(8)]
for q in (0, 1, 4, 5, 2, 6, 3, 7): a(f'ds_read_b64 {Rr[q]}, {aYr} offset:{YROW + 2048*q}')
for s in range(8): a(f'v_pk_mul_f32 {GA[s]}, {GA[s]}, {sG[2*s:2*s+2]} op_sel_hi:[1,0]')
R0, R4, A1, Bq1, A2, Bq2, A3, Bq3 = Rr
E = [V.alloc(2, 2) for _ in range(4)]; e0 = V.alloc(2, 2); e1 = V.alloc(2, 2)
Oo = [V.alloc(2, 2) for _ in range(4)]
a(f'''
v_pk_add_f32 {e0}, {R0}, {R4}
v_pk_add_f32 {e1}, {R0}, {R4} {NEG1}
v_pk_add_f32 {E[0]}, {e0}, {A2}
v_pk_add_f32 {E[2]}, {e0}, {A2} {NEG1}
v_pk_add_f32 {E[1]}, {e1}, {Bq2}
v_pk_add_f32 {E[3]}, {e1}, {Bq2} {NEG1}
v_pk_add_f32 {Oo[0]}, {A1}, {A3}
v_pk_add_f32 {e0}, {A1}, {A3} {NEG1}
v_pk_add_f32 {Oo[2]}, {Bq1}, {Bq3} {NEG1}
v_pk_add_f32 {e1}, {Bq1}, {Bq3}
''')
yy = Rr
a(f'''
v_pk_add_f32 {yy[0]}, {E[0]}, {Oo[0]}
v_pk_add_f32 {yy[4]}, {E[0]}, {Oo[0]} {NEG1}
v_pk_add_f32 {Oo[1]}, {e1}, {e0}
v_pk_add_f32 {Oo[3]}, {e1}, {e0} {NEG1}
v_pk_add_f32 {yy[2]}, {E[2]}, {Oo[2]}
v_pk_add_f32 {yy[6]}, {E[2]}, {Oo[2]} {NEG1}
v_pk_fma_f32 {yy[1]}, {Oo[1]}, {sH}, {E[1]} op_sel_hi:[1,0,1]
v_pk_fma_f32 {yy[5]}, {Oo[1]}, {sH}, {E[1]} op_sel_hi:[1,0,1] neg_lo:[1,0,0] neg_hi:[1,0,0]
v_pk_fma_f32 {yy[3]}, {Oo[3]}, {sH}, {E[3]} op_sel_hi:[1,0,1]
v_pk_fma_f32 {yy[7]}, {Oo[3]}, {sH}, {E[3]} op_sel_hi:[1,0,1] neg_lo:[1,0,0] neg_hi:[1,0,0]
''')
of = V.alloc(8)
for s in (0, 4, 2, 6, 1, 5, 3, 7):
    a(f'v_pk_fma_f32 {yy[s]}, {yy[s]}, {sG[2*s:2*s+2]}, {GA[s]} op_sel:[0,1,0]')
for s in (0, 4, 2, 6, 1, 5, 3, 7):
    a(f'v_cvt_pk_bf16_f32 {of[s]}, {yy[s][0]}, {yy[s][1]}')
    a(f'buffer_store_dword {of[s]}, {vXo}, {sOut}, {sOff[s] if s else 0} offen')
stamp('f')
a(DELAY(2))
if opt('fix'):
    a(f'''
    s_add_u32 s96, s96, {opt('fix')}
    L_fix:
    s_memrealtime s[98:99]
    s_waitcnt lgkmcnt(0)
    s_sub_u32 s98, s98, s96
    s_cmp_lt_i32 s98, 0
    s_cbranch_scc1 L_fix
    ''')
a(f'''
s_or_b32 {sT}, s2, {sWave}
s_cmp_lg_u32 {sT}, 0
s_cbranch_scc1 L_fdone
v_mov_b32 {of[0]}, {sTag}
v_mov_b32 {vt}, 0
s_mov_b64 exec, 1
buffer_store_dword {of[0]}, {vt}, {sWS}, 0 offen
s_mov_b64 exec, -1
L_fdone:
''')
if STAMP:
    a('s_waitcnt vmcnt(0)'); stamp('f')
stamp_flush()
a('s_endpgm')
nf = nstamp[0]
vmax = V.hi

a.forget()
nstamp[0] = 0
V = Regs('v', 1, 250)
S2 = Regs('s', 3, 100)
for r in (sWS, sTag, sIdx, sW8, sWave, sT, sT2, sSpin, sPc, sStamp):
    for i in range(r.n): S2.free.discard(r.b + i)
sP = S2.alloc(16, 4); sE = S2.alloc(1); sD = S2.alloc(2); sK = S2.alloc(4); sCh = S2.alloc(1); sHf = S2.alloc(1)
EP_C, EP_R = 28832, 544
UREV, UREV_C = 0, 4224
KC, KC_C = 8448, 3104
EP = 14720
KEO, KEO_C, KEO_O = EP, 9600, 4800
YP, YP_S = EP + 19200, 144
a('L_conv:')
if OPT.get('only') == 'fft': a('s_endpgm')
if STAMP:
    a(f'{CLK} {sStamp}')
    nstamp[0] = 1
a(f's_load_dwordx16 {sP}, s[0:1], 8')
prm = V.alloc(8); vo = V.alloc(1); vo2 = V.alloc(1); vt = V.alloc(1); vt2 = V.alloc(1)
vlane = V.alloc(1); l15 = V.alloc(1); vg = V.alloc(1)
a(f'''
s_lshl_b32 {sT}, {sIdx}, 9
v_lshl_add_u32 {vo}, v0, 1, {sT}
s_lshr_b32 {sCh}, {sWave}, 1
s_and_b32 {sHf}, {sWave}, 1
s_lshl_b32 {sT}, {sIdx}, 1
s_add_u32 {sT}, {sT}, {sCh}
s_lshl_b32 {sT}, {sT}, 1
v_mov_b32 {vo2}, {sT}
v_and_b32 {vlane}, 63, v0
v_and_b32 {l15}, 15, v0
v_bfe_u32 {vg}, v0, 4, 2
s_waitcnt lgkmcnt(0)
global_load_ushort {prm[6]}, {vo2}, {sP[12:14]}
''')
if STAMP: a(f'v_writelane_b32 v255, {sStamp[0]}, 0')
for i in range(6): a(f'global_load_ushort {prm[i]}, {vo}, {sP[2*i:2*i+2]}')
a(f'''
s_load_dword {sE}, {sWS[0:2]}, 0
s_lshl_b32 {sT}, {sIdx}, 2
s_load_dword {sD[0]}, {sP[14:16]}, {sT}
''')
dummy = V.alloc(4)
if opt('pf', 1):
    a(f'v_lshlrev_b32 {vt}, 7, v0')
    a(f'v_min_u32 {vt}, L_codeend-L_pcref-4, {vt}')
    a(f'global_load_dword {dummy[0]}, {vt}, {sPc}')
if opt('tlb', 1):
    holes = []
    for pg in range(6):
        lo, hi = pg << 21, (pg + 1) << 21
        for (b, s, n, used) in ((XT_B, XT_S, 256, 12288), (T1_B, T1_S, 256, 11264), (T2_B, T2_S, 176, 16384), (AT_B, AT_S, 256, 12288)):
            c = [b + i * s + used for i in range(n) if lo <= b + i * s + used < hi]
            if c: holes.append(c[0]); break
    assert len(holes) == 6
    a(f'v_mov_b32 {vt2}, {holes[0]}')
    for i in range(1, 6): a(f'v_writelane_b32 {vt2}, {sT}, {i}' if False else f's_mov_b32 {sT}, {holes[i]}\nv_writelane_b32 {vt2}, {sT}, {i}')
    a(f'buffer_load_dword {dummy[1]}, {vt2}, {sWS}, 0 offen')
stamp('c')
a(DELAY(3))
aEP = V.alloc(1); aE = V.alloc(1); aPm = V.alloc(1); aK0 = V.alloc(1); aK1 = V.alloc(1); aK2 = V.alloc(1)
aX = V.alloc(9); aKw = V.alloc(1); aUw = V.alloc(1); aXg = V.alloc(1); aSt = V.alloc(1)
aB = V.alloc(8); aB0 = V.alloc(4); aAf = V.alloc(1); aYw = V.alloc(1); aYr = V.alloc(1)
zero = V.alloc(4, 4)
a(f'''
s_mul_i32 {sT}, {sCh}, {EP_C}
s_add_u32 {sT}, {sT}, {EP}
v_and_b32 {vt}, 127, v0
v_lshl_add_u32 {aEP}, {vt}, 2, {sT}
v_mul_u32_u24 {vt}, {EP_R}, {l15}
v_lshl_add_u32 {vt}, {vg}, 4, {vt}
v_add_u32 {aPm}, {sT}, {vt}
s_mul_i32 {sT2}, {sHf}, {16*EP_R}
v_add_u32 {aE}, {sT2}, {aPm}
s_lshl_b32 {sT}, {sHf}, 4
v_add_u32 {vo}, {sT}, {l15}
s_mul_i32 {sT}, {sCh}, {KC_C}
s_add_u32 {sT}, {sT}, {KC + 16}
v_lshlrev_b32 {vt}, 3, {vo}
v_lshl_add_u32 {vt}, {vg}, 2, {vt}
v_lshlrev_b32 {vt2}, 2, {vo}
v_add_u32 {vt2}, 256, {vt2}
v_cmp_eq_u32 vcc, 2, {vg}
v_lshlrev_b32 {aK1}, 1, {vo}
v_add_u32 {aK1}, 384, {aK1}
v_cndmask_b32 {vt}, {vt}, {vt2}, vcc
v_cmp_eq_u32 vcc, 3, {vg}
v_mov_b32 {vt2}, 2
v_lshl_add_u32 {aK2}, {vg}, 7, {vo}
v_cndmask_b32 {vt}, {vt}, {aK1}, vcc
v_cndmask_b32 {vt2}, {vt2}, 64, vcc
v_lshl_add_u32 {aK0}, {vt}, 2, {sT}
v_lshl_add_u32 {aK1}, {vt2}, 2, {aK0}
v_add_u32 {aK2}, 512, {aK2}
v_lshl_add_u32 {aK2}, {aK2}, 2, {sT}
v_lshlrev_b32 {vt}, 3, v0
v_lshlrev_b32 {vt2}, 2, v0
v_add_u32 {vt2}, 128, {vt2}
v_min_u32 {vt}, {vt}, {vt2}
v_lshlrev_b32 {vt2}, 1, v0
v_add_u32 {vt2}, 256, {vt2}
v_min_u32 {vt}, {vt}, {vt2}
v_add_u32 {vt2}, 384, v0
v_min_u32 {vt}, {vt}, {vt2}
v_lshlrev_b32 {vt}, 2, {vt}
v_add_u32 {vt}, {KC + 16}, {vt}
v_and_b32 {vt2}, 1, v0
v_lshlrev_b32 {vt2}, 16, {vt2}
v_or_b32 {vt2}, 0x11100000, {vt2}
v_mov_b32 {vo}, 0x22111000
v_cmp_gt_u32 vcc, 128, v0
v_mov_b32 {vo2}, 0x43222100
s_nop 0
v_cndmask_b32 {vt2}, {vt2}, {vo}, vcc
v_cmp_gt_u32 vcc, 64, v0
v_mov_b32 {vo}, 0x76543210
s_nop 0
v_cndmask_b32 {vt2}, {vt2}, {vo2}, vcc
v_cmp_gt_u32 vcc, 32, v0
s_nop 1
v_cndmask_b32 {vt2}, {vt2}, {vo}, vcc
v_cmp_gt_u32 vcc, 33, v0
v_add_u32 {vo}, -4, {vt}
''')
for e in range(8):
    a(f'v_bfe_u32 {aX[e+1]}, {vt2}, {4*e}, 4'); a(f'v_lshl_add_u32 {aX[e+1]}, {aX[e+1]}, 2, {vt}')
a(f'''
v_cndmask_b32 {aX[0]}, {vt}, {vo}, vcc
v_lshrrev_b32 {vt}, 3, v0
v_mul_u32_u24 {aKw}, 144, {vt}
v_and_b32 {vt2}, 7, v0
v_lshl_add_u32 {aKw}, {vt2}, 4, {aKw}
v_lshlrev_b32 {aUw}, 4, {vt}
v_sub_u32 {vt2}, 7, {vt2}
v_lshl_add_u32 {aUw}, {vt2}, 1, {aUw}
v_mul_u32_u24 {aXg}, {XT_S}, v0
v_lshlrev_b32 {aSt}, 4, v0
s_lshl_b32 {sK[0]}, {sIdx}, 4
s_add_u32 {sK[0]}, {sK[0]}, {XT_B}
s_add_u32 {sK[1]}, {sK[0]}, 4096
s_add_u32 {sK[2]}, {sK[0]}, 8192
v_and_b32 {vt}, 3, v0
v_bfe_u32 {vt2}, v0, 4, 1
v_lshl_add_u32 {vt}, {vt2}, 2, {vt}
v_bfe_u32 {vo}, v0, 2, 2
v_bfe_u32 {vo2}, v0, 5, 1
v_lshrrev_b32 {aAf}, 1, {vt}
v_lshl_add_u32 {aAf}, {vo2}, 2, {aAf}
v_add_u32 {aAf}, -3, {aAf}
v_and_b32 {vt2}, 1, {vt}
v_sub_u32 {vt2}, 1, {vt2}
v_mul_u32_u24 {vt2}, {KEO_O}, {vt2}
v_mul_u32_u24 {aYw}, 144, {vo}
s_mul_i32 {sT}, {sCh}, {KEO_C}
s_add_u32 {sT}, {sT}, {KEO + 144}
v_add3_u32 {vt2}, {vt2}, {aYw}, {sT}
v_lshl_add_u32 {aB[0]}, {aAf}, 2, {vt2}
''')
for b in range(1, 8): a(f'v_add_u32 {aB[b]}, {576*b}, {aB[0]}')
for j in range(4):
    a(f'v_add_u32 {aYr}, {j}, {aAf}')
    a(f'v_ashrrev_i32 {aYw}, 31, {aYr}')
    a(f'v_lshl_add_u32 {aYr}, {aYw}, 2, {aYr}')
    a(f'v_lshl_add_u32 {aB0[j]}, {aYr}, 2, {vt2}')
a(f'''
v_and_b32 {aAf}, 31, v0
v_sub_u32 {aAf}, {aAf}, {vo2}
s_mul_i32 {sT}, {sCh}, {UREV_C}
s_add_u32 {sT}, {sT}, {UREV + 32}
v_lshl_add_u32 {aAf}, {aAf}, 4, {sT}
v_lshl_add_u32 {vt}, {vo}, 6, {vt}
v_lshl_add_u32 {vt}, {vo2}, 5, {vt}
v_mul_u32_u24 {aYw}, {YP_S}, {vt}
s_lshl_b32 {sT}, {sWave}, 5
v_add_u32 {aYw}, {sT}, {aYw}
v_mul_u32_u24 {aYr}, {YP_S}, v0
v_mov_b32 {zero[0]}, 0
v_mov_b32 {zero[1]}, 0
v_mov_b32 {zero[2]}, 0
v_mov_b32 {zero[3]}, 0
v_and_b32 {vt}, 7, v0
v_lshlrev_b32 {vt}, 4, {vt}
ds_write_b128 {vt}, {zero} offset:{UREV}
ds_write_b128 {vt}, {zero} offset:{UREV + UREV_C}
ds_write_b128 {zero[0]}, {zero} offset:{KC}
ds_write_b128 {zero[0]}, {zero} offset:{KC + KC_C}
''')
stamp('c')
L2E = 1 / math.log(2); L2Eh = struct.unpack('<f', struct.pack('<f', L2E))[0]; L2El = L2E - L2Eh
dt = V.alloc(1); lm = V.alloc(1); rvv = V.alloc(1); tA = V.alloc(4); tB = V.alloc(4)
z = V.alloc(2, 2); w = V.alloc(2, 2); q = V.alloc(2, 2); cB = V.alloc(2, 2); cC = V.alloc(2, 2)
a(f'''
v_lshlrev_b32 {dt}, 16, {prm[6]}
v_mul_f32 {tA[0]}, {f2u(L2Eh)}, {dt}
s_mov_b32 {sT}, {f2u(L2Eh)}
v_fma_f32 {tA[1]}, {dt}, {sT}, -{tA[0]}
v_exp_f32 {tA[0]}, {tA[0]}
v_fmamk_f32 {tA[1]}, {dt}, {f2u(L2El)}, {tA[1]}
v_mul_f32 {tA[1]}, {f2u(math.log(2))}, {tA[1]}
v_fma_f32 {dt}, {tA[0]}, {tA[1]}, {tA[0]}
v_cvt_pk_bf16_f32 {dt}, {dt}, {dt}
v_and_b32 {dt}, 0xffff0000, {dt}
v_lshlrev_b32 {lm}, 16, {prm[0]}
v_lshlrev_b32 {rvv}, 16, {prm[1]}
v_lshlrev_b32 {cB[0]}, 16, {prm[2]}
v_lshlrev_b32 {cB[1]}, 16, {prm[3]}
v_lshlrev_b32 {cC[0]}, 16, {prm[4]}
v_lshlrev_b32 {cC[1]}, 16, {prm[5]}
v_mul_f32 {lm}, {dt}, {lm}
v_mul_f32 {rvv}, {dt}, {rvv}
v_mul_f32 {cB[0]}, {dt}, {cB[0]}
v_mul_f32 {cB[1]}, {dt}, {cB[1]}
v_mul_f32 {lm}, {f2u(L2Eh)}, {lm}
v_mul_f32 {rvv}, 0.15915494, {rvv}
''')
for i, (d, m) in enumerate(((w, 8.0), (z, 1.0), (q, 256.0))):
    a(f'v_mul_f32 {tA[i]}, {f2u(m)}, {lm}'); a(f'v_mul_f32 {tB[i]}, {f2u(m)}, {rvv}')
for i in range(3):
    a(f'v_exp_f32 {tA[i]}, {tA[i]}'); a(f'v_fract_f32 {tB[i]}, {tB[i]}')
for i, d in enumerate((w, z, q)):
    a(f'v_cos_f32 {d[0]}, {tB[i]}'); a(f'v_sin_f32 {d[1]}, {tB[i]}')
for i, d in enumerate((w, z, q)):
    a(f'v_mul_f32 {d[0]}, {tA[i]}, {d[0]}'); a(f'v_mul_f32 {d[1]}, {tA[i]}, {d[1]}')
ob = V.alloc(14); obi = [0]; obc = [6]
def put(row, val, neg):
    o = ob[2*obc[0] + obi[0] % 2]; obi[0] += 1
    return [f'v_cvt_pk_bf16_f32 {o}, {val[0]}, {"-" if neg else ""}{val[1]}', f'ds_write_b32 {aEP}, {o} offset:{row*EP_R}']
Ec = [[V.alloc(2, 2) for _ in range(2)] for _ in range(4)]
E4 = V.alloc(2, 2)
Pz = [V.alloc(2, 2) for _ in range(8)]; Pq = [V.alloc(2, 2) for _ in range(2)]; Px = [V.alloc(2, 2) for _ in range(3)]
chains = []
head = []
head += [f'v_mov_b32 {ob[0]}, 0x3f80', f'ds_write_b32 {aEP}, {ob[0]} offset:0']
head += cmul(Ec[2][0], w, w) + cmul(Pz[0], cC, cB)
head += put(1, w, 0)
head += cmul(Ec[3][0], Ec[2][0], w) + cmul(E4, Ec[2][0], Ec[2][0])
head += put(2, Ec[2][0], 0) + put(32, Pz[0], 1)
emit(head)
for ch in range(4):
    steps = []; obc[0] = ch
    first = {1: w, 2: Ec[2][0], 3: Ec[3][0], 0: E4}[ch]
    cur = first; idx = ch if ch else 4
    if ch == 3: steps.append(put(3, cur, 0))
    if ch == 0: steps.append(put(4, cur, 0))
    pp = 1
    while idx + 4 < 32:
        nxt = Ec[ch][pp]; pp ^= 1
        steps.append(cmul(nxt, cur, E4)); idx += 4
        steps.append(put(idx, nxt, 0)); cur = nxt
    chains.append(steps)
st = []; obc[0] = 4
for i in range(1, 8):
    st.append(cmul(Pz[i], Pz[i-1], z)); st.append(put(32 + i, Pz[i], 1))
for i, (src, row) in enumerate(((2, 9), (4, 10), (6, 11))):
    st.append(cmul(Px[i], Pz[src], q)); st.append(put(32 + row, Px[i], 1))
st.append(cmul(Px[0], Px[1], q)); st.append(put(32 + 13, Px[0], 1))
st.append(cmul(Px[2], Px[0], q)); st.append(put(32 + 15, Px[2], 1))
chains.append(st)
st = []; cur = Pz[0]; obc[0] = 5
for i, row in enumerate((8, 12, 14, 16, 17, 18, 19, 20)):
    nxt = Pq[i & 1]
    st.append(cmul(nxt, cur, q)); st.append(put(32 + row, nxt, 1)); cur = nxt
chains.append(st)
pos = [[0, 0] for _ in chains]
live = True
while live:
    live = False
    for ci, ch in enumerate(chains):
        si, ii = pos[ci]
        reps = 2 if ci == 4 else 1
        for _ in range(reps):
            si, ii = pos[ci]
            if si >= len(ch): continue
            live = True
            a(ch[si][ii]); ii += 1
            if ii == len(ch[si]): si += 1; ii = 0
            pos[ci] = [si, ii]
a(f'''
s_mul_i32 {sTag}, {sE}, 0x9E3779B1
s_add_u32 {sTag}, {sTag}, 0x7F4A7C15
s_lshr_b32 {sD[1]}, {sD[0]}, 16
s_lshl_b32 {sD[1]}, {sD[1]}, 16
s_and_b32 {sD[0]}, {sD[0]}, 0xffff
''')
a.barrier()
stamp('c')
V.release(*[x for p in Ec for x in p], E4, *Pz, *Pq, *Px, ob, z, w, q, cB, cC, tA, tB, dt, lm, rvv, prm)
XU = V.alloc(12, 4); X = [XU[s + s // 3] for s in range(8)]
xloads = [f'buffer_load_dwordx4 {XU[4*u:4*u+4]}, {aXg}, {sWS}, {sK[u]} offen sc1' for u in range(3)]
FB = [V.alloc(4, 4) for _ in range(8)]; FA = [[V.alloc(4, 4) for _ in range(8)] for _ in range(2)]
K0 = V.alloc(4, 4); K1 = V.alloc(4, 4)
for k in range(8):
    a(f'ds_read_b128 {FB[k]}, {aE} offset:{64*k}')
    a(f'ds_read_b128 {FA[0][k]}, {aPm} offset:{32*EP_R + 64*k}')
    a(f'ds_read_b128 {FA[1][k]}, {aPm} offset:{48*EP_R + 64*k}')
for k in range(8):
    a(mf16(K0, FA[0][k], FB[k], K0 if k else 0)); a(mf16(K1, FA[1][k], FB[k], K1 if k else 0))
emit(xloads)
a(f'ds_write_b64 {aK0}, {K0[0:2]}'); a(f'ds_write_b64 {aK1}, {K0[2:4]}')
a('s_mov_b32 exec_hi, 0')
for r in range(4): a(f'ds_write_b32 {aK2}, {K1[r]} offset:{128*r}')
a('s_mov_b64 exec, -1')
a.barrier()
V.release(*FB, *FA[0], *FA[1], K0, K1)
kv = [V.alloc(9) for _ in range(2)]; kE = [V.alloc(4, 4) for _ in range(2)]; kO = [V.alloc(4, 4) for _ in range(2)]
for c in range(2):
    for e in range(9): a(f'ds_read_b32 {kv[c][e]}, {aX[e]} offset:{KC_C*c}')
for c in range(2):
    for o in range(2): a(f'ds_write_b128 {zero[0]}, {zero} offset:{KEO + KEO_C*c + KEO_O*o + 112}')
for c in range(2):
    for i in range(4):
        a(f'v_cvt_pk_bf16_f32 {kE[c][i]}, {kv[c][2*i+1]}, {kv[c][2*i+2]}')
        a(f'v_cvt_pk_bf16_f32 {kO[c][i]}, {kv[c][2*i]}, {kv[c][2*i+1]}')
    a(f'ds_write_b128 {aKw}, {kE[c]} offset:{KEO + KEO_C*c + 144}')
    a(f'ds_write_b128 {aKw}, {kO[c]} offset:{KEO + KEO_C*c + KEO_O + 144}')
stamp('c')
check_retry(xloads, [XU[3], XU[7], XU[11]], vt, vt2)
stamp('c')
for s in range(8):
    a(f'ds_write_b16 {aUw}, {X[s]} offset:{UREV + 128 + 512*s}')
    a(f'ds_write_b16_d16_hi {aUw}, {X[s]} offset:{UREV + UREV_C + 128 + 512*s}')
a.barrier()
V.release(*kv, *kE, *kO, aEP, aE, aPm, aK0, aK1, aK2, aX, aKw, aUw, zero, vo, vo2, l15, vg, vlane)
stamp('c')

ACC = [V.alloc(16, 4) for _ in range(4)]
FAb = [V.alloc(32, 4) for _ in range(2)]; FBb = [V.alloc(32, 4) for _ in range(2)]
FA = [[FAb[p][4*i:4*i+4] for i in range(8)] for p in range(2)]; FB = [[FBb[p][4*i:4*i+4] for i in range(8)] for p in range(2)]
EM = [FAb[0][8*i:8*i+6] for i in range(4)]
def reads(kp, nmax):
    o = []
    for b in range(nmax + 1):
        o.append(f'ds_read_b128 {FA[kp&1][b]}, {aAf} offset:{512*b + (6 - 2*kp)*16 - 0}')
        if kp == 0:
            for j in range(4): o.append(f'ds_read_b32 {FB[0][b][j]}, {aB0[j]} offset:{576*b}')
        else:
            o.append(f'ds_read2_b32 {FB[kp&1][b][0:2]}, {aB[b]} offset0:{8*kp} offset1:{8*kp+1}')
            o.append(f'ds_read2_b32 {FB[kp&1][b][2:4]}, {aB[b]} offset0:{8*kp+2} offset1:{8*kp+3}')
    return o
DP = 'row_mask:0xf bank_mask:0xf bound_ctrl:1'
def lower(acc, slot, onto=False):
    o = []
    for i in range(4):
        d = EM[i][slot]
        if onto: o.append(f'v_add_f32 {d}, {acc[i]}, {d}'); o.append(f'v_add_f32_dpp {d}, {acc[4+i]}, {d} row_shr:4 {DP}')
        else: o.append(f'v_add_f32_dpp {d}, {acc[4+i]}, {acc[i]} row_shr:4 {DP}')
    for i in range(4): o.append(f'v_add_f32_dpp {EM[i][slot]}, {acc[8+i]}, {EM[i][slot]} row_shr:8 {DP}')
    for i in range(4): o.append(f'v_add_f32_dpp {EM[i][slot]}, {acc[12+i]}, {EM[i][slot]} row_shr:12 {DP}')
    return o
def upper(acc, slot):
    o = []
    for i in range(4): o.append(f'v_mov_b32_dpp {EM[i][slot]}, {acc[12+i]} row_shl:4 {DP}')
    for i in range(4): o.append(f'v_add_f32_dpp {EM[i][slot]}, {acc[8+i]}, {EM[i][slot]} row_shl:8 {DP}')
    for i in range(4): o.append(f'v_add_f32_dpp {EM[i][slot]}, {acc[4+i]}, {EM[i][slot]} row_shl:12 {DP}')
    return o
def conv_variant(taus, plan):
    nmax = max(taus)
    emit(reads(0, nmax))
    if opt('cvtest') == 4:
        n0 = nstamp[0]; stamp('c')
        if taus[0] == 0: nstamp[0] = n0
    for kp in range(4):
        if kp == 0:
            order = sorted([(ti, b) for ti, t in enumerate(taus) for b in range(t + 1)], key=lambda x: max(x[1], taus[x[0]] - x[1]))
        else:
            order = [(ti, b) for ti, t in enumerate(taus) for b in range(t + 1)]
        fill = reads(kp + 1, nmax) if kp < 3 else []
        if opt('cvtest') == 1: fill = []
        if opt('cvtest') == 2: fill = [x for x in fill if 'b128' in x]
        if opt('cvtest') == 3: fill = [x for x in fill if 'b128' not in x]
        seen = set(); pend = []
        for n, (ti, b) in enumerate(order):
            first = kp == 0 and ti not in seen; seen.add(ti)
            a(mf32(ACC[ti], FA[kp&1][taus[ti] - b], FB[kp&1][b], 0 if first else ACC[ti]))
            if kp < 3:
                k = -(-len(fill) // (len(order) - n)) if n >= 1 else 0
                for _ in range(k): a(fill.pop(0))
            else:
                if b == 1 and ti > 0: pend += plan[ti - 1]
                if b == 0 and ti > 0 and taus[ti] == 0: pend += plan[ti - 1]
                for _ in range(min(6, len(pend))): a(pend.pop(0))
        emit(pend)
    emit(plan[len(taus) - 1])
    for i in range(4):
        a(f'ds_write_b128 {aYw}, {EM[i][0:4]} offset:{YP + 8*YP_S*i}')
        a(f'ds_write_b64 {aYw}, {EM[i][4:6]} offset:{YP + 8*YP_S*i + 16}')
a(f's_cmp_eq_u32 {sHf}, 1'); a('s_cbranch_scc1 L_cvb')
conv_variant((0, 3, 4, 7), [lower(ACC[0], 0) + upper(ACC[0], 1), lower(ACC[1], 2) + upper(ACC[1], 3), lower(ACC[2], 3, True) + upper(ACC[2], 4), lower(ACC[3], 5)])
a('s_waitcnt lgkmcnt(0)'); a('s_branch L_cvj'); a('L_cvb:')
conv_variant((1, 2, 5, 6), [lower(ACC[0], 0) + upper(ACC[0], 1), lower(ACC[1], 1, True) + upper(ACC[1], 2), lower(ACC[2], 3) + upper(ACC[2], 4), lower(ACC[3], 4, True) + upper(ACC[3], 5)])
a('s_waitcnt lgkmcnt(0)'); a('L_cvj:')
a('s_barrier')
stamp('c')
V.release(*ACC, *FAb, *FBb)
YV = [V.alloc(6, 2) for _ in range(4)]
for i in range(4):
    a(f'ds_read_b128 {YV[i][0:4]}, {aYr} offset:{YP + 32*i}'); a(f'ds_read_b64 {YV[i][4:6]}, {aYr} offset:{YP + 32*i + 16}')
a(f'''
s_mul_i32 {sT}, {sIdx}, {AT_S}
s_add_u32 {sK[0]}, {sT}, {AT_B}
s_add_u32 {sK[1]}, {sK[0]}, 4096
s_add_u32 {sK[2]}, {sK[0]}, 8192
''')
OU = V.alloc(12, 4)
for u in range(3): a(f'v_mov_b32 {OU[4*u+3]}, {sTag}')
a(f'v_mov_b32 {OU[10]}, 0')
yv = []
for c in range(2):
    A, B = YV[2*c], YV[2*c+1]
    a(f'v_add_f32 {B[0]}, {B[0]}, {A[1]}'); a(f'v_add_f32 {A[2]}, {A[2]}, {B[2]}')
    a(f'v_add_f32 {B[3]}, {B[3]}, {A[4]}'); a(f'v_add_f32 {A[5]}, {A[5]}, {B[5]}')
    yv.append([A[0], B[0], B[1], A[2], A[3], B[3], B[4], A[5]])
for c in range(2):
    for s in range(8): a(f'v_dot2_f32_bf16 {yv[c][s]}, {X[s]}, {sD[c]}, {yv[c][s]}')
for s in range(8): a(f'v_cvt_pk_bf16_f32 {OU[s + s//3]}, {yv[0][s]}, {yv[1][s]}')
for u in range(3): a(f'buffer_store_dwordx4 {OU[4*u:4*u+4]}, {aSt}, {sWS}, {sK[u]} offen sc1')
if STAMP:
    stamp('c'); a('s_waitcnt vmcnt(0)'); stamp('c')
stamp_flush()
a('L_end:')
a('s_endpgm')
a('L_codeend:')
vmax = max(vmax, V.hi)
smax = max(S.hi, S2.hi)

hdr = open('gated_mix__ssm_conv_s4__spectral_gfnet__prompt.s.ref').read().split('; Override launch')[0]
nv = 256
src = hdr + f'''; @launch grid=(512,1,1) block=(256,1,1) lds={LDS_BYTES}
; stampinfo ({nf}, {nstamp[0]}, {list(range(p2start, p2end))})
; Generated by dev/gen.py. One launch, 512 workgroups: ids 0..255 run the 2-D FFT filter path (three phases joined by
; tagged 16-byte hand-off units in d_ws), ids 256..511 build the S4 kernel and run the causal convolution on MFMA.
.amdgcn_target "amdgcn-amd-amdhsa--gfx950"
.text
.globl {KNAME}
.p2align 8
.type {KNAME},@function
{KNAME}:
''' + a.text() + f'''.section .rodata,"a"
.p2align 6
.amdhsa_kernel {KNAME}
  .amdhsa_next_free_vgpr {nv}
  .amdhsa_next_free_sgpr {100 if opt('delay') or opt('fix') else max(smax, 16)}
  .amdhsa_accum_offset {nv}
  .amdhsa_group_segment_fixed_size 0
  .amdhsa_kernarg_size 128
  .amdhsa_user_sgpr_count 2
  .amdhsa_user_sgpr_kernarg_segment_ptr 1
  .amdhsa_system_sgpr_workgroup_id_x 1
.end_amdhsa_kernel
'''
open(sys.argv[1], 'w').write(src)
print('vgpr hi', vmax, 'sgpr hi', smax, 'nops', a.nnop, 'lines', len(a.out))
```

```python
import re

TRANS = ('v_exp_f32', 'v_log_f32', 'v_rcp_f32', 'v_rsq_f32', 'v_sqrt_f32', 'v_sin_f32', 'v_cos_f32')

def parse_regs(tok):
    tok = tok.strip()
    tok = tok.lstrip('-')
    if tok.startswith('abs(') or tok.startswith('|'):
        tok = tok.strip('abs()|')
    m = re.fullmatch(r'([vsa])(\d+)', tok)
    if m: return [(m.group(1), int(m.group(2)))]
    m = re.fullmatch(r'([vsa])\[(\d+):(\d+)\]', tok)
    if m: return [(m.group(1), i) for i in range(int(m.group(2)), int(m.group(3)) + 1)]
    if tok in ('vcc', 'vcc_lo', 'vcc_hi'): return [('vcc', 0)]
    if tok in ('exec', 'exec_lo', 'exec_hi'): return [('exec', 0)]
    if tok == 'm0': return [('m0', 0)]
    return []

class Ins:
    def __init__(self, text):
        self.text = text
        t = text.split(';')[0].strip()
        self.label = t.endswith(':')
        self.op = t.split()[0] if t and not self.label else ''
        rest = t[len(self.op):].strip()
        ops, cur, depth = [], '', 0
        for ch in rest:
            if ch == '[': depth += 1
            if ch == ']': depth -= 1
            if ch == ',' and depth == 0:
                ops.append(cur); cur = ''
            else: cur += ch
        if cur.strip(): ops.append(cur)
        self.mods = ''
        if ops:
            parts = ops[-1].strip().split(None, 1)
            ops[-1] = parts[0]
            self.mods = parts[1] if len(parts) > 1 else ''
        self.ops = [o.strip() for o in ops]
        op = self.op
        self.mfma = op.startswith('v_mfma')
        self.valu = op.startswith('v_') and not self.mfma
        self.ds = op.startswith('ds_')
        self.vmem = op.startswith('buffer_') or op.startswith('global_')
        self.smem = op.startswith('s_load') or op.startswith('s_memtime') or op.startswith('s_memrealtime')
        self.salu = op.startswith('s_') and not self.smem
        self.trans = op.replace('_e32', '').replace('_e64', '') in TRANS
        self.dpp = '_dpp' in op or any(k in self.mods for k in ('row_sh', 'row_ror', 'quad_perm', 'wave_sh', 'row_bcast', 'row_mirror', 'row_half'))
        self.dot = op.startswith('v_dot')
        self.perml = op.startswith('v_permlane')
        self.rdlane = op.startswith('v_readlane') or op.startswith('v_readfirstlane')
        R = [parse_regs(o) for o in self.ops]
        w, r = [], []
        self.loaddst = []
        self.srcc = []
        if self.mfma:
            w = R[0]; r = R[1] + R[2] + R[3]; self.srcab = R[1] + R[2]; self.srcc = R[3]
            self.passes = 8 if '32x32x16' in op else 4
        elif self.valu:
            if op.startswith('v_swap') or self.perml:
                w = R[0] + R[1]; r = R[0] + R[1]
            elif op.startswith('v_cmpx'):
                w = R[0] + [('exec', 0)]; r = sum(R[1:], [])
            elif re.match(r'v_(add|sub|subrev|addc|subb)_co', op):
                w = R[0] + R[1]; r = sum(R[2:], [])
            else:
                w = R[0]; r = sum(R[1:], [])
                if op.startswith('v_fmac') or op.startswith('v_dot2c') or op.startswith('v_writelane') or self.dpp or 'sdwa' in op:
                    r = r + R[0]
                if op.startswith('v_cndmask') and len(self.ops) == 3: r = r + [('vcc', 0)]
        elif self.ds:
            if op.startswith('ds_read') or op.startswith('ds_bpermute') or op.startswith('ds_swizzle') or '_rtn' in op:
                self.loaddst = R[0]; w = R[0]; r = sum(R[1:], [])
                if 'd16' in op: r = r + R[0]
            else:
                r = sum(R, [])
        elif self.vmem:
            if '_load' in op:
                self.loaddst = R[0]; w = R[0]; r = sum(R[1:], [])
                if 'd16' in op: r = r + R[0]
            else:
                r = sum(R, [])
            self.widestore = ('store' in op) and ('x3' in op or 'x4' in op)
            self.stdata = (R[0] if op.startswith('buffer') else R[1]) if 'store' in op else []
        elif self.smem:
            self.loaddst = R[0]; w = R[0]; r = sum(R[1:], [])
        elif self.salu:
            if op.startswith('s_cmp') or op.startswith('s_cbranch') or op.startswith('s_bitcmp') or op in ('s_branch', 's_barrier', 's_nop', 's_waitcnt', 's_endpgm', 's_sleep', 's_setprio'):
                r = sum(R, [])
                if 'vcc' in op: r = r + [('vcc', 0)]
                if 'exec' in op: r = r + [('exec', 0)]
            elif 'saveexec' in op:
                w = R[0] + [('exec', 0)]; r = R[1] + [('exec', 0)]
            else:
                w = R[0] if R else []; r = sum(R[1:], [])
        self.w = set(w); self.r = set(r)

    def states(self):
        if self.op == 's_nop': return int(self.ops[0], 0) + 1
        if self.label or not self.op: return 0
        return 1

def need_states(p, c):
    n = 0
    vw = {x for x in p.w if x[0] in 'va'}
    sw = {x for x in p.w if x[0] in ('s', 'vcc')}
    if p.valu:
        if c.mfma and (vw & c.r): n = max(n, 2)
        if c.valu and c.dpp and (vw & c.r): n = max(n, 2)
        if c.rdlane and (vw & c.r): n = max(n, 1)
        if c.perml and (vw & c.r): n = max(n, 2)
        if p.trans and c.valu and not c.trans and (vw & c.r): n = max(n, 1)
        if p.trans and (c.mfma or c.ds or c.vmem) and (vw & c.r): n = max(n, 2 if c.mfma else 1)
        if p.dot and (c.valu or c.mfma or c.ds or c.vmem) and (vw & (c.r | c.w)):
            if not (c.op == p.op and not (vw & set(parse_regs(c.ops[1]) + parse_regs(c.ops[2])))):
                n = max(n, 3)
        if sw & c.r:
            if c.valu: n = max(n, 4 if c.op.startswith('v_readlane') or c.op.startswith('v_writelane') else 2)
            if c.vmem: n = max(n, 5)
            if c.salu or c.smem: n = max(n, 1)
        if ('exec', 0) in p.w:
            if c.dpp: n = max(n, 5)
            if c.rdlane or c.perml or c.mfma: n = max(n, 4)
            if c.salu and ('exec', 0) in c.r: n = max(n, 1)
    if p.mfma:
        big = 12 if p.passes == 8 else 8
        if c.mfma:
            if p.w & set(c.srcab): n = max(n, big)
            sc = set(c.srcc)
            if p.w & sc:
                if not (sc == p.w and c.passes == p.passes): n = max(n, 10 if p.passes == 8 else 6)
            elif p.w & c.w: n = max(n, big)
        elif c.valu or c.ds or c.vmem:
            if p.w & (c.r | c.w): n = max(n, big)
        if (c.valu or c.loaddst) and (set(p.srcc) & c.w): n = max(n, 7 if p.passes == 8 else 3)
    if p.vmem and getattr(p, 'widestore', False):
        if (c.valu or c.mfma) and (set(p.stdata) & c.w): n = max(n, 2)
        elif c.loaddst and (set(p.stdata) & c.w): n = max(n, 1)
    if p.salu and ('m0', 0) in p.w and (c.vmem or c.ds): n = max(n, 1)
    return n

class Asm:
    def __init__(self):
        self.out = []
        self.vm = []
        self.lg = []
        self.nnop = 0
    def raw(self, text):
        self.out.append(Ins('; ' + text) if False else RawLine(text))
    def __call__(self, text):
        for line in text.strip('\n').split('\n'):
            s = line.strip()
            if not s or s.startswith(';'):
                if s: self.out.append(RawLine('    ' + s))
                continue
            self.emit(Ins(s))
    def _waits(self, ins):
        touched = ins.r | ins.w
        nv = None
        for i, d in enumerate(self.vm):
            if d & touched: nv = len(self.vm) - 1 - i
        nl = None
        for i, (d, sm) in enumerate(self.lg):
            if d & touched:
                nl = len(self.lg) - 1 - i
        if nl is not None and any(sm for _, sm in self.lg): nl = 0
        parts = []
        if nv is not None: parts.append(f'vmcnt({min(nv,63)})')
        if nl is not None: parts.append(f'lgkmcnt({min(nl,15)})')
        if parts: self.emit(Ins('s_waitcnt ' + ' '.join(parts)))
    def emit(self, ins):
        if ins.label:
            self.out.append(ins); return
        if ins.op == 's_waitcnt':
            t = ins.text
            m = re.search(r'vmcnt\((\d+)\)', t)
            if m:
                n = int(m.group(1)); self.vm = self.vm[len(self.vm) - n:] if n < len(self.vm) else self.vm
                if n == 0: self.vm = []
            m = re.search(r'lgkmcnt\((\d+)\)', t)
            if m:
                n = int(m.group(1))
                if n == 0: self.lg = []
                elif n < len(self.lg): self.lg = self.lg[len(self.lg) - n:]
            self.out.append(ins); return
        self._waits(ins)
        need, dist = 0, 0
        for p in reversed(self.out):
            if isinstance(p, RawLine): continue
            if dist > 24: break
            if not p.label:
                k = need_states(p, ins) - dist
                if k > need: need = k
            dist += p.states()
        while need > 0:
            k = min(need, 16)
            self.out.append(Ins(f's_nop {k-1}')); need -= k; self.nnop += 1
        self.out.append(ins)
        if ins.vmem: self.vm.append(set(ins.loaddst))
        if ins.ds: self.lg.append((set(ins.loaddst), False))
        if ins.smem: self.lg.append((set(ins.loaddst), True))
        if len(self.lg) > 15 and not any(sm for _, sm in self.lg):
            pass
    def forget(self):
        self.vm = []; self.lg = []
    def barrier(self):
        self('s_waitcnt lgkmcnt(0)')
        self('s_barrier')
    def text(self):
        o = []
        for i in self.out:
            if isinstance(i, RawLine): o.append(i.text)
            elif i.label: o.append(i.text)
            else: o.append('    ' + i.text)
        return '\n'.join(o) + '\n'

class RawLine:
    def __init__(self, text): self.text = text

class Regs:
    def __init__(self, kind, lo, hi):
        self.kind, self.free, self.hi = kind, set(range(lo, hi)), lo
        self.named = {}
    def alloc(self, n=1, align=None):
        if align is None: align = 1 if n == 1 else (2 if self.kind == 'v' else min(4, 1 << (n - 1).bit_length()))
        b = 0
        while True:
            if b % align == 0 and all((b + i) in self.free for i in range(n)):
                for i in range(n): self.free.discard(b + i)
                self.hi = max(self.hi, b + n)
                return R(self.kind, b, n)
            b += 1
            if b > 600: raise RuntimeError('out of registers')
    def release(self, *rs):
        for r in rs:
            for i in range(r.n):
                assert (r.b + i) not in self.free
                self.free.add(r.b + i)

class R:
    def __init__(self, kind, b, n): self.kind, self.b, self.n = kind, b, n
    def __getitem__(self, i):
        if isinstance(i, slice):
            st = i.start or 0; en = i.stop if i.stop is not None else self.n
            assert 0 <= st < en <= self.n, (st, en, self.n)
            return R(self.kind, self.b + st, en - st)
        assert 0 <= i < self.n, (i, self.n)
        return R(self.kind, self.b + i, 1)
    def __str__(self):
        return f'{self.kind}{self.b}' if self.n == 1 else f'{self.kind}[{self.b}:{self.b+self.n-1}]'
    __repr__ = __str__
    def __format__(self, spec): return str(self)

import subprocess, tempfile, os
NOPROMO = ('v_swap', 'v_readfirstlane', 'v_permlane', 'v_nop', 'v_fmamk', 'v_fmaak', 'v_cndmask', 'v_cmp', 'v_dot2c', 'v_mov_b64', 'v_accvgpr')
def _sizes(text):
    d = tempfile.mkdtemp()
    open(d + '/a.s', 'w').write('.amdgcn_target "amdgcn-amd-amdhsa--gfx950"\n.text\n' + text + 'L_tab:\n')
    r = subprocess.run(['clang', '-x', 'assembler', '-target', 'amdgcn-amd-amdhsa', '-mcpu=gfx950', '-c', d + '/a.s', '-o', d + '/a.o'], capture_output=True, text=True)
    assert r.returncode == 0, r.stderr
    o = subprocess.run(['llvm-objdump', '-d', '--mcpu=gfx950', d + '/a.o'], capture_output=True, text=True).stdout
    sz = []
    for l in o.split('\n'):
        m = re.search(r'// [0-9A-F]{12}: ((?:[0-9A-F]{8} ?)+)', l)
        if m: sz.append(4 * len(m.group(1).split()))
    return sz
def align_pass(asm, minrun=1, noprun=6):
    idx = [i for i, x in enumerate(asm.out) if isinstance(x, Ins) and not x.label and x.op]
    sz = _sizes(asm.text())
    assert len(sz) == len(idx), (len(sz), len(idx))
    off = 0; n = 0; k = 0; inserts = []
    offs = []
    while k < len(idx):
        if sz[k] == 8 and off % 8 == 4:
            r = 0
            while k + r < len(idx) and sz[k + r] == 8: r += 1
            j = k - 1; o = off - 4; done = False
            while j >= 0 and sz[j] == 4:
                x = asm.out[idx[j]]
                if o % 8 == 0 and x.valu and not x.op.startswith(NOPROMO) and not x.op.endswith('_e64') and r >= minrun:
                    x.text = x.text.replace(x.op, x.op + '_e64', 1); x.op += '_e64'
                    sz[j] = 8; off += 4; n += 1; done = True
                    break
                j -= 1; o -= 4
            if not done and r >= noprun:
                inserts.append(idx[k]); off += 4
        off += sz[k]; k += 1
    for i in reversed(inserts): asm.out.insert(i, Ins('s_nop 0'))
    return n, len(inserts)
```

```python
exec(open('gen7_head.py').read())

EARLYPF = f'''s_getpc_b64 {sPc}
L_pc0:
v_lshlrev_b32 v255, 7, v0
v_min_u32 v255, L_codeend-L_pc0-4, v255
global_load_dword v255, v255, {sPc}''' if opt('epf', 1) else ''
sP = S.alloc(16, 4)
a(f'''
L_codestart:
s_cmp_ge_u32 s2, 512
s_cbranch_scc1 L_end
{'s_memrealtime s[96:97]' if opt('fix') else ''}
{CLK + ' s[72:73]' if STAMP else ''}
{EARLYPF}
v_lshrrev_b32 v1, 6, v0
s_and_b32 {sW8}, s2, 7
v_readfirstlane_b32 {sWave}, v1
s_bfe_u32 {sT2}, s2, 0x50003
s_lshl_b32 {sIdx}, {sW8}, 5
s_add_u32 {sIdx}, {sIdx}, {sT2}
s_cmp_ge_u32 s2, 256
s_cbranch_scc1 L_conv
''')
nstamp[0] = 1 if STAMP else 0

V = Regs('v', 1, VTOP)
sX = S.alloc(2); sGl = S.alloc(8, 4); sWr = sGl[0:4]; sWi = sGl[4:8]
sGrp = S.alloc(1); sP1 = S.alloc(1); sHh = S.alloc(2); sK = S.alloc(4); sE2 = S.alloc(1); sC = S.alloc(3, 1)
sG = S.alloc(8); sOm = S.alloc(8, 2)
ROWS, T1IMG, GIN, T2IN = 0, 8192, 0, 0
CT = 19456
names = ['B1re0', 'B1re1', 'B1im0', 'B1im1', 'TWc0', 'TWc1', 'TWs0', 'TWs1',
         'M1', 'M2', 'M3', 'M4', 'MN1', 'MN2', 'Z1', 'Z2', 'Z3', 'Z4', 'ZN1', 'ZN2',
         'Pa0', 'Pa1', 'Pb0', 'Pb1', 'T3c0', 'T3c1', 'T3s0', 'T3s1', 'B200', 'B201', 'B210', 'B211',
         'S1re', 'S1im', 'S2re', 'S2im', 'S3re', 'S3im', 'S4re', 'S4im', 'T1c', 'T1s', 'T2c', 'T2s']
TB = {n: CT + 1024 * i for i, n in enumerate(names)}
T2IMG = YROW = CT
WIMG = CT; WPL = 256 * 48
GPART = CT + 1024 * len(names)
assert GPART + 128 <= LDS_BYTES
GIN_S = 3104

X = V.alloc(8); vXo = V.alloc(8)
vTl = V.alloc(1); vTag = V.alloc(1); GW = V.alloc(1); vT4 = V.alloc(1)
WR = V.alloc(8, 2); WI = V.alloc(8, 2); vWo = V.alloc(1)
l15 = V.alloc(1); vg = V.alloc(1); aL = V.alloc(1); vt = V.alloc(1); vt2 = V.alloc(1)
fl = V.alloc(1); fg = V.alloc(1); f1 = V.alloc(1); fb = V.alloc(1); fp1 = V.alloc(1)
rv = V.alloc(8, 2); tc = V.alloc(8, 2); ts = V.alloc(8, 2); o = [V.alloc(4, 2) for _ in range(4)]
if OPT.get('only') == 'conv': a('s_endpgm')
a(f'''
s_load_dwordx2 {sX}, s[0:1], 0
s_load_dwordx16 {sP}, s[0:1], 64
s_setprio {opt('pf0', 3)}
s_lshl_b32 {sT}, {sIdx}, 10
v_lshlrev_b32 {vT4}, 2, v0
v_add_u32 {vXo[0]}, {sT}, {vT4}
''')
for i in range(1, 8): a(f'v_add_u32 {vXo[i]}, {i*262144}, {vXo[0]}')
def xload():
    stamp('x-prek')
    a('s_waitcnt lgkmcnt(0)')
    stamp('x-karg')
    for s1 in (0, 4, 2, 6, 1, 5, 3, 7): a(f'global_load_dword {X[s1]}, {vXo[s1]}, {sX}')
    if WSO: a(f's_add_u32 {sP[14]}, {sP[14]}, {WSO}'); a(f's_addc_u32 {sP[15]}, {sP[15]}, 0')
    a(f'v_mov_b32 {vTag}, 0'); a(f'global_load_dword {vTag}, {vTag}, {sP[14:16]}')
    if opt('tlb'):
        a(f'v_mul_u32_u24 {vTl}, {opt("tlb")*4096}, v0'); a(f'v_min_u32 {vTl}, {WS_USED - 4096}, {vTl}')
        a(f'global_load_dword {vTl}, {vTl}, {sP[14:16]} offset:2048')
if opt('kfirst', 1): xload()
a(f'''
v_and_b32 {l15}, 15, v0
v_bfe_u32 {vg}, v0, 4, 2
v_and_b32 {aL}, 63, v0
v_cvt_f32_u32 {fl}, {l15}
v_cvt_f32_u32 {fg}, {vg}
v_lshlrev_b32 {aL}, 4, {aL}
v_mul_f32 {fg}, 4.0, {fg}
''')
def angles(dst, f, base, ks=(0, 1, 2, 3)):
    for r, k in enumerate(ks):
        if k == 0: continue
        elif k == 1: a(f'v_add_f32 {dst[r]}, {f}, {base}')
        else: a(f'v_fmamk_f32 {dst[r]}, {f}, {f2u(float(k))}, {base}')
def cossin(c, s, ang, n=4):
    for r in range(n):
        a(f'v_cos_f32 {c[r]}, {ang[r]}'); a(f'v_sin_f32 {s[r]}, {ang[r]}')
def put(name, reg): a(f'ds_write_b128 {aL}, {reg} offset:{TB[name]}')
def pack(dst, lo, hi):
    for r in range(4): a(f'v_cvt_pk_bf16_f32 {dst[r]}, {lo(r)}, {hi(r)}')
def jobs(tag, fns):
    vm, lg = list(a.vm), list(a.lg)
    a(f's_bitcmp1_b32 {sWave}, 1'); a(f's_cbranch_scc1 L_{tag}23')
    a(f's_bitcmp1_b32 {sWave}, 0'); a(f's_cbranch_scc1 L_{tag}1')
    for i, f in enumerate(fns):
        if i == 1: a(f'L_{tag}1:')
        if i == 2:
            a(f'L_{tag}23:'); a(f's_bitcmp1_b32 {sWave}, 0'); a(f's_cbranch_scc1 L_{tag}3')
        if i == 3: a(f'L_{tag}3:')
        f()
        if i < 3: a(f's_branch L_{tag}d')
        a.vm, a.lg = list(vm), list(lg)
    a(f'L_{tag}d:')
def jB1():
    a(f'v_mul_f32 {f1}, {f2u(1/32)}, {fl}'); a(f'v_mul_f32 {rv[0]}, {f1}, {fg}')
    angles(rv, f1, rv[0], [16 * (e >> 2) + (e & 3) for e in range(8)]); cossin(tc, ts, rv, 8)
    pack(o[0], lambda r: tc[2*r], lambda r: tc[2*r+1]); pack(o[1], lambda r: f'-{ts[2*r]}', lambda r: f'-{ts[2*r+1]}')
    put('B1re0', o[0]); put('B1im0', o[1])
    for r in range(4):
        a(f'v_xor_b32 {o[2][r]}, 0x80000000, {o[0][r]}'); a(f'v_xor_b32 {o[3][r]}, 0x80000000, {o[1][r]}')
    put('B1re1', o[2]); put('B1im1', o[3])
def jTW():
    for cb in range(2):
        if cb == 0: a(f'v_mul_f32 {f1}, {f2u(1/512)}, {fl}')
        else: a(f'v_add_f32 {f1}, {f2u(16/512)}, {f1}')
        a(f'v_mul_f32 {rv[4*cb]}, {f1}, {fg}'); angles(rv[4*cb:4*cb+4], f1, rv[4*cb])
    cossin(tc, ts, rv, 8)
    put('TWc0', tc[0:4]); put('TWc1', tc[4:8]); put('TWs0', ts[0:4]); put('TWs1', ts[4:8])
def jM():
    a(f'''
    v_lshrrev_b32 {f1}, 1, {l15}
    v_and_b32 {fb}, 1, {l15}
    v_cvt_f32_u32 {f1}, {f1}
    v_cvt_f32_u32 {fb}, {fb}
    v_mul_f32 {f1}, {f2u(1/16)}, {f1}
    v_mul_f32 {rv[0]}, {f2u(0.25)}, {fb}
    v_fmac_f32 {rv[0]}, {f1}, {fg}
    ''')
    angles(rv, f1, rv[0]); cossin(tc, ts, rv)
    pack(o[0], lambda r: tc[r], lambda r: ts[r]); pack(o[1], lambda r: ts[r], lambda r: f'-{tc[r]}'); pack(o[2], lambda r: f'-{ts[r]}', lambda r: tc[r])
    put('M1', o[0]); put('M2', o[1]); put('M3', o[0]); put('M4', o[2]); put('Z1', o[0]); put('Z4', o[0])
def jMN():
    a(f'v_add_u32 {fb}, {l15}, {l15}')
    for k, code in enumerate((0x11, 0xc4, 0x01, 0x10)):
        a(f's_movk_i32 {sT}, {code}'); a(f'v_bfe_i32 {tc[k]}, {sT}, {fb}, 2'); a(f'v_cvt_f32_i32 {tc[k]}, {tc[k]}')
    for r in range(4): a(f'v_mov_b32 {rv[r]}, 0')
    put('Z2', rv[0:4]); put('Z3', rv[0:4])
    for k, n in enumerate(('MN1', 'MN2', 'ZN1', 'ZN2')):
        a(f'v_lshrrev_b32 {o[k][0]}, 16, {tc[k]}'); a(f'v_lshrrev_b32 {o[k][2]}, 16, {tc[k]}')
        a(f'v_xor_b32 {o[k][1]}, 0x8000, {o[k][0]}'); a(f'v_xor_b32 {o[k][3]}, 0x8000, {o[k][0]}')
        put(n, o[k])
jobs('ja', [jB1, jTW, jM, jMN])
if not opt('kfirst', 1): xload()
else: a('s_waitcnt lgkmcnt(0)')
a('s_barrier')
stamp(); stamp('x-ld')
B1re = [V.alloc(4, 2) for _ in range(2)]; B1im = [V.alloc(4, 2) for _ in range(2)]
TWc = [V.alloc(4, 2) for _ in range(2)]; TWs = [V.alloc(4, 2) for _ in range(2)]
MM = [V.alloc(4, 2) for _ in range(6)]
aTk = V.alloc(4); aNy = V.alloc(1); aTr = V.alloc(1); aRd = V.alloc(1); vSt3 = V.alloc(1)
TU = V.alloc(12, 2)
a(f'''
s_cmp_eq_u32 {sWave}, 0
s_cselect_b32 {sT}, 6144, 0
v_add_u32 {vt}, {sT}, {aL}
''')
for cb in range(2):
    a(f'ds_read_b128 {B1re[cb]}, {aL} offset:{TB["B1re%d" % cb]}'); a(f'ds_read_b128 {B1im[cb]}, {aL} offset:{TB["B1im%d" % cb]}')
for cb in range(2):
    a(f'ds_read_b128 {TWc[cb]}, {aL} offset:{TB["TWc%d" % cb]}'); a(f'ds_read_b128 {TWs[cb]}, {aL} offset:{TB["TWs%d" % cb]}')
for k in range(6): a(f'ds_read_b128 {MM[k]}, {vt} offset:{TB["M1"] + 1024*k}')
a(f'''
s_lshr_b32 {sGrp}, s2, 3
s_lshr_b32 {sP1}, {sW8}, 1
s_sub_u32 {sT}, 0, {sP1}
s_cmp_eq_u32 {sW8}, 1
s_cselect_b32 {sT}, 4, {sT}
s_bitcmp1_b32 {sW8}, 0
s_cselect_b32 {sP1}, {sT}, {sP1}
s_mov_b64 {sWr[0:2]}, {sP[4:6]}
s_mov_b32 {sWr[2]}, 1052672
s_mov_b32 {sWr[3]}, 0x20000
s_mov_b64 {sWi[0:2]}, {sP[6:8]}
s_mov_b32 {sWi[2]}, 1052672
s_mov_b32 {sWi[3]}, 0x20000
global_load_dword {GW}, {vT4}, {sP[8:10]}
s_cmp_lg_u32 {sWave}, 3
s_cbranch_scc1 L_nwp
v_bfe_u32 {vt}, v0, 3, 3
s_lshl_b32 {sT}, {sGrp}, 6
s_add_u32 {sT}, {sT}, {sP1}
v_lshl_add_u32 {vt}, {vt}, 3, {sT}
v_and_b32 {vt}, 2047, {vt}
v_mul_u32_u24 {vt}, 514, {vt}
v_and_b32 {vt2}, 7, v0
v_min_u32 {vt2}, 4, {vt2}
v_lshl_add_u32 {vt}, {vt2}, 7, {vt}
v_and_b32 {vt}, -4, {vt}
buffer_load_dword {WR[0]}, {vt}, {sWr}, 0 offen
buffer_load_dword {WI[0]}, {vt}, {sWi}, 0 offen
L_nwp:
s_mov_b32 {sHh[0]}, {f2u(math.sqrt(0.5))}
s_lshl_b32 {sT}, {sWave}, 11
v_lshrrev_b32 {aTr}, 1, {aL}
v_add_u32 {aTr}, {sT}, {aTr}
''')
a.vm = a.vm[:-2]
stamp(); stamp('x-rdy')
P = [V.alloc(2, 2) for _ in range(8)]; A_ = [V.alloc(2, 2) for _ in range(8)]; O = V.alloc(8)
for i in (0, 2, 1, 3):
    for s in (i, i + 4):
        a(f'v_lshlrev_b32 {P[s][0]}, 16, {X[s]}'); a(f'v_and_b32 {P[s][1]}, 0xffff0000, {X[s]}')
    a(f'v_pk_add_f32 {A_[i]}, {P[i]}, {P[i+4]}'); a(f'v_pk_add_f32 {A_[i+4]}, {P[i]}, {P[i+4]} {NEG1}')
aa, bb = A_[:4], A_[4:]
c0, c1, Re2, Im2, t1, t2, Ra, Rb = P
def row_out(q, src):
    a(f'v_cvt_pk_bf16_f32 {O[q]}, {src[0]}, {src[1]}')
    a(f'ds_write_b32 {vT4}, {O[q]} offset:{ROWS + q*1024}')
a(f'''
v_pk_add_f32 {Re2}, {aa[0]}, {aa[2]} {NEG1}
v_pk_add_f32 {Im2}, {aa[3]}, {aa[1]} {NEG1}
v_pk_add_f32 {c0}, {aa[0]}, {aa[2]}
v_pk_add_f32 {c1}, {aa[1]}, {aa[3]}
''')
row_out(4, Re2)
a(f'v_pk_add_f32 {t1}, {bb[1]}, {bb[3]} {NEG1}'); a(f'v_pk_add_f32 {t2}, {bb[1]}, {bb[3]}')
row_out(5, Im2)
a(f'v_pk_add_f32 {Ra}, {c0}, {c1}'); a(f'v_pk_add_f32 {Rb}, {c0}, {c1} {NEG1}')
a(f'''
v_pk_fma_f32 {aa[0]}, {t1}, {sHh}, {bb[0]} op_sel_hi:[1,0,1]
v_pk_fma_f32 {aa[1]}, {t2}, {sHh}, {bb[2]} op_sel_hi:[1,0,1] neg_lo:[1,0,1] neg_hi:[1,0,1]
v_pk_fma_f32 {aa[2]}, {t1}, {sHh}, {bb[0]} op_sel_hi:[1,0,1] neg_lo:[1,0,0] neg_hi:[1,0,0]
v_pk_fma_f32 {aa[3]}, {t2}, {sHh}, {bb[2]} op_sel_hi:[1,0,1] neg_lo:[1,0,0] neg_hi:[1,0,0]
''')
row_out(0, Ra); row_out(1, Rb); row_out(2, aa[0]); row_out(3, aa[1]); row_out(6, aa[2]); row_out(7, aa[3])
stamp('x-p1a')
a.barrier()
stamp(); stamp('x-bar')
V.release(*P, *A_, O)
AF = [V.alloc(4, 2) for _ in range(2)]
for q in range(2):
    for i in range(2): a(f'ds_read_b64_tr_b16 {AF[q][2*i:2*i+2]}, {aTr} offset:{ROWS + q*1024 + i*512}')
a(f'''
s_mul_i32 {sT}, {sWave}, 2816
s_add_u32 {sT}, {sT}, {T1IMG}
v_lshl_add_u32 {vt}, {vg}, 6, {l15}
''')
def tk(n):
    if n: a(f'v_add_u32 {vt}, 16, {vt}')
    a(f'v_mul_u32_u24 {aTk[n]}, 171, {vt}'); a(f'v_lshrrev_b32 {aTk[n]}, 9, {aTk[n]}')
    a(f'v_add_u32 {fb}, {vt}, {aTk[n]}'); a(f'v_lshl_add_u32 {aTk[n]}, {fb}, 2, {sT}')
tk(0); tk(1)
Dre = [[V.alloc(4, 2) for cb in range(2)] for q in range(2)]; Dim = [[V.alloc(4, 2) for cb in range(2)] for q in range(2)]
for q in range(2):
    for cb in range(2):
        a(mf16(Dre[q][cb], AF[q], B1re[cb], 0)); a(mf16(Dim[q][cb], AF[q], B1im[cb], 0))
    if q == 0: tk(2); tk(3)
a(f'''
v_min_u32 {aNy}, 4, {aL}
v_add_u32 {aNy}, {sT}, {aNy}
''')
tt = V.alloc(10, 2); tre = tt[1:5]; tim = tt[5:9]
V.release(tt[0], tt[9])
BQ = [V.alloc(4, 2) for _ in range(2)]
F = [[V.alloc(4, 2) for cb in range(2)] for s in range(2)]; FN = V.alloc(4, 2)
extra = [f's_mov_b32 {sT2}, 0x9E3779B1', f'v_mul_lo_u32 {vTag}, {vTag}, {sT2}', f'v_add_u32 {vTag}, 0x7F4A7C15, {vTag}', f'v_lshlrev_b32 {aRd}, 4, v0']
def pipe(groups):
    held = []
    for v, m in groups:
        emit(v[:2]); emit(held); emit(v[2:]); held = m
    return held
gr = []
for q in range(2):
    for cb in range(2):
        m = [mf16(F[s][cb], MM[2*s+q], BQ[cb], 0 if q == 0 else F[s][cb]) for s in range(2)]
        if cb == 0: m.append(mf16(FN, MM[4+q], BQ[0], 0 if q == 0 else FN))
        gr.append((twiddle(Dre[q][cb], Dim[q][cb], TWc[cb], TWs[cb], tre, tim, BQ[cb], -1), m))
held = pipe(gr)
emit(extra[:2]); emit(held); emit(extra[2:])
o2 = V.alloc(10)
def outk(cb):
    for s in range(2):
        for j in range(2):
            oo = o2[4*cb + 2*s + j]
            a(f'v_cvt_pk_bf16_f32 {oo}, {F[s][cb][2*j]}, {F[s][cb][2*j+1]}')
            a(f'ds_write_b32 {aTk[cb + 2*j]}, {oo} offset:{1408*s}')
outk(0)
for s in range(2):
    a(f'v_cvt_pk_bf16_f32 {o2[8+s]}, {FN[2*s]}, {FN[2*s+1]}'); a(f'ds_write_b32 {aNy}, {o2[8+s]} offset:{341*4 + 1408*s}')
outk(1)
a(f'''
v_readfirstlane_b32 {sTag}, {vTag}
v_mov_b32 {TU[3]}, {vTag}
v_mov_b32 {TU[7]}, {vTag}
v_mov_b32 {TU[11]}, {vTag}
''')
stamp('x-p1b')
a.barrier()
stamp('x-bar2')
for i in range(3): a(f'ds_read_b96 {TU[4*i:4*i+3]}, {aRd} offset:{T1IMG + 4096*i}')
a(f'''
s_mov_b64 {sWS[0:2]}, {sP[14:16]}
s_mov_b32 {sWS[2]}, {WS_USED if not STAMP else 0x1000000}
s_mov_b32 {sWS[3]}, 0x20000
s_mul_i32 {sT}, {sIdx}, {T1_S}
s_add_u32 {sK[0]}, {sT}, {T1_B}
s_add_u32 {sK[1]}, {sK[0]}, 4096
s_add_u32 {sK[2]}, {sK[0]}, 8192
s_cmp_eq_u32 {sWave}, 3
s_cmov_b32 {sK[2]}, 0x40000000
''')
for i in range(3): a(f'buffer_store_dwordx4 {TU[4*i:4*i+4]}, {aRd}, {sWS}, {sK[i]} offen sc1')
a(f's_setprio {opt("plo", 3)}')
stamp(); stamp('x-st')
V.release(*AF, *Dre[0], *Dre[1], *Dim[0], *Dim[1], *BQ, *F[0], *F[1], FN, o2, *B1re, *B1im, *TWc, *TWs, *MM, aTk, aNy, aTr, vSt3)

a(f'v_cvt_f32_i32 {fp1}, {sP1}')
def jS1():
    a(f'v_fmamk_f32 {f1}, {fl}, {f2u(8.0)}, {fp1}'); a(f'v_mul_f32 {f1}, {f2u(1/128)}, {f1}'); a(f'v_mul_f32 {rv[0]}, {f1}, {fg}')
    angles(rv, f1, rv[0])
    for r in range(4): a(f'v_mul_f32 {rv[4+r]}, {f2u(1/16)}, {rv[r]}')
    cossin(tc, ts, rv, 8)
    pack(o[0], lambda r: tc[r], lambda r: ts[r]); pack(o[1], lambda r: f'-{ts[r]}', lambda r: tc[r])
    put('S1re', o[0]); put('S1im', o[1]); put('T1c', tc[4:8]); put('T1s', ts[4:8])
def jS2():
    a(f'v_mul_f32 {f1}, {f2u(1/16)}, {fl}'); a(f'v_mul_f32 {rv[0]}, {f1}, {fg}'); angles(rv, f1, rv[0]); cossin(tc, ts, rv)
    pack(o[0], lambda r: tc[r], lambda r: ts[r]); pack(o[1], lambda r: f'-{ts[r]}', lambda r: tc[r])
    put('S2re', o[0]); put('S2im', o[1])
    for r in range(4):
        a(f'v_xor_b32 {o[2][r]}, 0x80000000, {o[0][r]}'); a(f'v_xor_b32 {o[3][r]}, 0x8000, {o[1][r]}')
    put('S3re', o[2]); put('S3im', o[3])
def jP():
    a(f'''
    v_and_b32 {fb}, 1, {vg}
    v_mul_f32 {f1}, {f2u(1/16)}, {fl}
    v_cvt_f32_u32 {fb}, {fb}
    v_mul_f32 {fb}, 4.0, {fb}
    v_mul_f32 {rv[0]}, {fb}, {f1}
    v_bfe_i32 {vt}, {vg}, 1, 1
    v_and_b32 {vt}, 0x80008000, {vt}
    v_xor_b32 {vt2}, 0x80008000, {vt}
    ''')
    angles(rv, f1, rv[0]); cossin(tc, ts, rv)
    pack(o[0], lambda r: tc[r], lambda r: f'-{ts[r]}'); pack(o[1], lambda r: ts[r], lambda r: tc[r])
    put('Pa0', o[0]); put('Pa1', o[1])
    for r in range(4):
        a(f'v_xor_b32 {o[2][r]}, {vt2}, {o[1][r]}'); a(f'v_xor_b32 {o[3][r]}, {vt}, {o[0][r]}')
    put('Pb0', o[2]); put('Pb1', o[3])
def jB2():
    a(f'v_mul_f32 {f1}, {f2u(1/32)}, {fl}'); a(f'v_mul_f32 {rv[0]}, {f1}, {fg}')
    angles(rv, f1, rv[0]); cossin(tc, ts, rv)
    a(f'v_bfe_i32 {vt}, {l15}, 0, 1'); a(f'v_and_b32 {vt}, 0x80008000, {vt}')
    pack(o[0], lambda r: tc[r], lambda r: f'-{ts[r]}')
    for r in range(4):
        a(f'v_xor_b32 {o[2][r]}, {vt}, {o[0][r]}'); a(f'v_xor_b32 {o[1][r]}, {"0x80008000" if r & 1 else 0}, {o[0][r]}')
    for r in range(4): a(f'v_xor_b32 {o[3][r]}, {vt}, {o[1][r]}')
    put('B200', o[0]); put('B201', o[1]); put('B210', o[2]); put('B211', o[3])
def jS4():
    a(f'''
    v_fmamk_f32 {fb}, {fg}, {f2u(8.0)}, {fp1}
    v_mul_f32 {f1}, {f2u(1/16)}, {fl}
    v_mul_f32 {fb}, {fb}, {fl}
    v_mul_f32 {rv[0]}, {f2u(1/128)}, {fb}
    ''')
    angles(rv, f1, rv[0])
    for r in range(4): a(f'v_mul_f32 {rv[4+r]}, {f2u(1/16)}, {rv[r]}')
    cossin(tc, ts, rv, 8)
    pack(o[0], lambda r: tc[r], lambda r: f'-{ts[r]}'); pack(o[1], lambda r: ts[r], lambda r: tc[r])
    put('S4re', o[0]); put('S4im', o[1]); put('T2c', tc[4:8]); put('T2s', ts[4:8])
def jT3(blk):
    a(f'v_mul_f32 {f1}, {f2u(1/512)}, {fl}')
    if blk: a(f'v_add_f32 {fb}, {f2u(16.0)}, {fg}')
    a(f'v_mul_f32 {rv[0]}, {f1}, {fb if blk else fg}')
    angles(rv, f1, rv[0]); cossin(tc, ts, rv)
    for e in range(4):
        a(f'v_mul_f32 {tc[e]}, {f2u(2.0**-19)}, {tc[e]}'); a(f'v_mul_f32 {ts[e]}, {f2u(2.0**-19)}, {ts[e]}')
    put(f'T3c{blk}', tc[0:4]); put(f'T3s{blk}', ts[0:4])
def gate_partial():
    for s in range(8): a(f'v_dot2_f32_bf16 {G[s]}, {X[s]}, {GW}, 0')
    a(f's_lshl_b32 {sT}, {sWave}, 5'); a(f's_add_u32 {sT}, {sT}, {GPART}')
    for i in range(4): a(f'v_add_f32_dpp {gt[i]}, {G[2*i]}, {G[2*i]} row_ror:4 row_mask:0xf bank_mask:0x5')
    for i in range(4): a(f'v_add_f32_dpp {gt[i]}, {G[2*i+1]}, {G[2*i+1]} row_ror:4 row_mask:0xf bank_mask:0xa')
    for i in range(2): a(f'v_add_f32_dpp {G[i]}, {gt[2*i]}, {gt[2*i]} row_ror:8 row_mask:0xf bank_mask:0x3')
    a(f'v_and_b32 {G[2]}, 28, v0')
    for i in range(2): a(f'v_add_f32_dpp {G[i]}, {gt[2*i+1]}, {gt[2*i+1]} row_ror:8 row_mask:0xf bank_mask:0xc')
    a(f'''
    v_add_u32 {G[2]}, {sT}, {G[2]}
    v_permlane16_swap_b32 {G[0]}, {G[1]}
    v_add_f32 {G[0]}, {G[0]}, {G[1]}
    v_mov_b32 {G[1]}, {G[0]}
    v_permlane32_swap_b32 {G[0]}, {G[1]}
    v_add_f32 {G[0]}, {G[0]}, {G[1]}
    v_add_f32_dpp {G[0]}, {G[0]}, {G[0]} quad_perm:[1,0,3,2] row_mask:0xf bank_mask:0xf
    v_add_f32_dpp {G[0]}, {G[0]}, {G[0]} quad_perm:[2,3,0,1] row_mask:0xf bank_mask:0xf
    ds_write_b32 {G[2]}, {G[0]}
    ''')
def gate_final():
    a(f'''
    v_and_b32 {G[2]}, 7, v0
    v_lshlrev_b32 {G[2]}, 2, {G[2]}
    v_add_u32 {G[2]}, {GPART}, {G[2]}
    ds_read2_b32 {G[4:6]}, {G[2]} offset1:8
    ds_read2_b32 {G[6:8]}, {G[2]} offset0:16 offset1:24
    v_add_f32 {G[4]}, {G[4]}, {G[5]}
    v_add_f32 {G[6]}, {G[6]}, {G[7]}
    v_add_f32 {G[0]}, {G[4]}, {G[6]}
    v_mul_f32 {G[0]}, {f2u(-1/math.log(2))}, {G[0]}
    v_exp_f32 {G[0]}, {G[0]}
    v_add_f32 {G[0]}, 1.0, {G[0]}
    v_rcp_f32 {G[0]}, {G[0]}
    v_cvt_pk_bf16_f32 {G[0]}, {G[0]}, {G[0]}
    v_and_b32 {G[1]}, 0xffff0000, {G[0]}
    v_sub_f32 {G[2]}, 1.0, {G[1]}
    ''')
    for s in range(8):
        a(f'v_readlane_b32 {sG[s]}, {G[1]}, {s}'); a(f'v_readlane_b32 {sOm[s]}, {G[2]}, {s}')
    for s in range(8): a(f's_lshr_b32 {sGl[s]}, {sG[s]}, 16')
a('s_waitcnt vmcnt(3)')
a(f's_cmp_ge_u32 {sGrp}, 22'); a('s_cbranch_scc1 L_p3')
p2start = nstamp[0]
Sm = {n: V.alloc(4, 2) for n in ('S1re', 'S1im', 'S2re', 'S2im', 'S3re', 'S3im', 'S4re', 'S4im', 'T1c', 'T1s', 'T2c', 'T2s')}
Wc = [V.alloc(4, 2) for _ in range(3)]; Ws = [V.alloc(4, 2) for _ in range(3)]
aG = V.alloc(1); aGw = V.alloc(1); aGr = V.alloc(1); aUw = V.alloc(1); aUr = V.alloc(1); aWq = V.alloc(1)
L = V.alloc(16, 2); UU = V.alloc(16, 2)
a(f'''
v_lshrrev_b32 {vt}, 1, v0
v_lshl_add_u32 {vWo}, {vt}, 3, {sP1}
v_add_u32 {vt2}, 1024, {vWo}
v_and_b32 {vWo}, 2047, {vWo}
v_mul_u32_u24 {vWo}, 514, {vWo}
v_mul_u32_u24 {vt2}, 514, {vt2}
v_and_b32 {aWq}, 1, v0
v_lshlrev_b32 {aWq}, 4, {aWq}
v_and_b32 {vWo}, -4, {vWo}
v_and_b32 {vt2}, -4, {vt2}
v_add_u32 {vWo}, {vWo}, {aWq}
v_add_u32 {vt2}, {vt2}, {aWq}
s_mul_i32 {sT}, {sGrp}, 24
buffer_load_dwordx4 {WR[0:4]}, {vWo}, {sWr}, {sT} offen
buffer_load_dwordx4 {WI[0:4]}, {vWo}, {sWi}, {sT} offen
buffer_load_dwordx4 {WR[4:8]}, {vt2}, {sWr}, {sT} offen
buffer_load_dwordx4 {WI[4:8]}, {vt2}, {sWi}, {sT} offen
v_mad_u32_u24 {vWo}, {vt}, 48, {aWq}
''')
jobs('jb', [jS1, jS2, jS4, lambda: None])
a(f'''
v_bfe_u32 {vt}, v0, 2, 4
v_mul_u32_u24 {aG}, {T1_S}, {vt}
v_and_b32 {vt}, 3, v0
v_lshl_add_u32 {aG}, {vt}, 4, {aG}
s_mul_i32 {sT}, {sW8}, 22
s_add_u32 {sT}, {sT}, {sGrp}
s_mul_i32 {sT2}, {sWave}, {64*T1_S}
s_lshl_b32 {sK[0]}, {sT}, 6
s_add_u32 {sK[0]}, {sK[0]}, {sT2}
s_add_u32 {sK[0]}, {sK[0]}, {T1_B}
s_add_u32 {sK[1]}, {sK[0]}, {16*T1_S}
s_add_u32 {sK[2]}, {sK[0]}, {32*T1_S}
s_add_u32 {sK[3]}, {sK[0]}, {48*T1_S}
s_mul_i32 {sE}, {sT}, {T2_S}
s_add_u32 {sE}, {sE}, {T2_B}
''')
stamp()
loads = [f'buffer_load_dwordx4 {L[4*i:4*i+4]}, {aG}, {sWS}, {sK[i]} offen sc1' for i in range(4)]
def p2_prep_a():
    for n in ('S1re', 'S1im', 'T1c', 'T1s', 'S2re', 'S2im', 'S3re', 'S3im', 'T2c', 'T2s', 'S4re', 'S4im'):
        a(f'ds_read_b128 {Sm[n]}, {aL} offset:{TB[n]}')
    a(f'''
    v_mul_u32_u24 {aGw}, {GIN_S}, {vt}
    v_lshrrev_b32 {vt2}, 2, v0
    v_lshl_add_u32 {aGw}, {vt2}, 4, {aGw}
    s_mul_i32 {sT}, {sWave}, {GIN_S}
    v_add_u32 {aGr}, {sT}, {aL}
    v_lshrrev_b32 {aUr}, 3, v0
    v_add_u32 {aUr}, {aUr}, v0
    v_and_b32 {aUr}, 3, {aUr}
    v_lshlrev_b32 {aUr}, 4, {aUr}
    v_lshl_add_u32 {aUr}, {vt2}, 6, {aUr}
    v_lshl_add_u32 {vt2}, {vg}, 6, {l15}
    v_mul_u32_u24 {aWq}, 48, {vt2}
    s_mul_i32 {sT}, {sWave}, 3
    s_and_b32 {sT2}, {sP1}, 1
    s_add_u32 {sT}, {sT}, {sT2}
    s_lshl_b32 {sT}, {sT}, 1
    s_add_u32 {sT}, {sT}, {WIMG}
    v_add_u32 {aWq}, {sT}, {aWq}
    v_lshrrev_b32 {aUw}, 1, {l15}
    v_add_u32 {aUw}, {sWave}, {aUw}
    v_and_b32 {aUw}, 3, {aUw}
    v_lshlrev_b32 {aUw}, 4, {aUw}
    v_lshl_add_u32 {aUw}, {vt2}, 6, {aUw}
    ''')
    for k in range(3):
        for r in (0, 2): a(f'v_mov_b64 {Wc[k][r:r+2]}, 0'); a(f'v_mov_b64 {Ws[k][r:r+2]}, 0')
    for k in range(3):
        for r in range(4):
            a(f'ds_read_u16_d16_hi {Wc[k][r]}, {aWq} offset:{768*r + 2*k}')
            a(f'ds_read_u16_d16_hi {Ws[k][r]}, {aWq} offset:{WPL + 768*r + 2*k}')
    for r in range(4): a(f'v_mov_b32 {UU[4*r+3]}, {vTag}')
a('s_waitcnt vmcnt(4)')
stamp()
emit(loads)
for h_ in range(2):
    a(f'ds_write_b128 {vWo}, {WR[4*h_:4*h_+4]} offset:{WIMG + 6144*h_}'); a(f'ds_write_b128 {vWo}, {WI[4*h_:4*h_+4]} offset:{WIMG + WPL + 6144*h_}')
V.release(WR, WI, vWo)
a.barrier()
p2_prep_a()
a(f'''
s_or_b32 {sT}, {sGrp}, {sWave}
s_cmp_eq_u32 {sT}, 0
s_cselect_b32 {sT}, 0.5, 1.0
''')
for r in range(4): a(f'v_mul_f32 {Wc[0][r]}, {sT}, {Wc[0][r]}'); a(f'v_mul_f32 {Ws[0][r]}, {sT}, {Ws[0][r]}')
a('s_setprio 3')
check_retry(loads, [L[4*i+3] for i in range(4)], vt, opt('sl1', 2), prio=3)
stamp(); stamp('y-got')
for i in range(3):
    for j in range(i + 1, 4):
        if j == 3: a(f'v_mov_b32 {L[4*i+3]}, {L[12+i]}')
        else: a(f'v_swap_b32 {L[4*i+j]}, {L[4*j+i]}')
    a(f'ds_write_b128 {aGw}, {L[4*i:4*i+4]} offset:{GIN + 1024*i}')
stamp('y-pre')
a.barrier()
stamp('y-bar')
for k in range(3): a(f'ds_read_b128 {L[4*k:4*k+4]}, {aGr} offset:{GIN + 1024*k}')
D1 = [V.alloc(4, 2) for _ in range(3)]; D2 = [V.alloc(4, 2) for _ in range(3)]
Z = [L[4*k:4*k+4] for k in range(3)]
for k in range(3):
    a(mf16(D1[k], Z[k], Sm['S1re'], 0)); a(mf16(D2[k], Z[k], Sm['S1im'], 0))
gr = []
for k in range(3): gr.append((twiddle(D1[k], D2[k], Sm['T1c'], Sm['T1s'], tre, tim, Z[k], -1), [mf16(D1[k], Sm['S2re'], Z[k], 0), mf16(D2[k], Sm['S2im'], Z[k], 0)]))
for k in range(3): gr.append((twiddle(D1[k], D2[k], Wc[k], Ws[k], tre, tim, Z[k], +1), [mf16(D1[k], Z[k], Sm['S3re'], 0), mf16(D2[k], Z[k], Sm['S3im'], 0)]))
for k in range(3): gr.append((twiddle(D1[k], D2[k], Sm['T2c'], Sm['T2s'], tre, tim, Z[k], +1), [mf16(D1[k], Sm['S4re'], Z[k], 0), mf16(D2[k], Sm['S4im'], Z[k], 0)]))
held = pipe(gr)
for r in range(2): a(f'v_cvt_pk_bf16_f32 {UU[4*r]}, {D1[0][r]}, {D2[0][r]}')
emit(held)
stamp('y-s4')
for k in range(3):
    for r in range(4):
        if k == 0 and r < 2: continue
        a(f'v_cvt_pk_bf16_f32 {UU[4*r+k]}, {D1[k][r]}, {D2[k][r]}')
        if k == 2: a(f'ds_write_b128 {aUw}, {UU[4*r:4*r+4]} offset:{T2IMG + 1024*r}')
stamp('y-wr')
a.barrier()
stamp('y-bar2')
for i in range(4): a(f'ds_read_b128 {UU[4*i:4*i+4]}, {aUr} offset:{T2IMG + 4096*i}')
a(f'''
s_add_u32 {sK[1]}, {sE}, 4096
s_add_u32 {sK[2]}, {sE}, 8192
s_add_u32 {sK[3]}, {sE}, 12288
''')
for i in range(4): a(f'buffer_store_dwordx4 {UU[4*i:4*i+4]}, {aRd}, {sWS}, {sK[i] if i else sE} offen sc1')
a(f'''
s_cmp_lg_u32 {sWave}, 3
s_cbranch_scc1 L_p3
s_mov_b64 exec, 1
s_add_u32 {sT}, {sE}, 16384
v_mov_b32 {vt}, 0
buffer_store_dword {vTag}, {vt}, {sWS}, {sT} offen sc1
s_mov_b64 exec, -1
L_p3:
''')
a(f's_setprio {opt("plo2", 3)}')
p2end = nstamp[0]
stamp(); stamp('y-st')
V.release(*Sm.values(), *Wc, *Ws, aG, aGw, aGr, aUw, aUr, aWq, *D1, *D2, UU, L)
B1 = [[V.alloc(4, 2) for c in range(2)] for q in range(2)]
T3c = [V.alloc(4, 2) for _ in range(2)]; T3s = [V.alloc(4, 2) for _ in range(2)]
B2 = [[V.alloc(4, 2) for db in range(2)] for blk in range(2)]; AN = [V.alloc(4, 2) for q in range(2)]; NB = V.alloc(4, 2)
g1 = V.alloc(1); g3 = V.alloc(1); w3 = V.alloc(1); aA = V.alloc(3); aAr = V.alloc(1); aF = V.alloc(3); aN = V.alloc(1); aYw = V.alloc(1); aYr = V.alloc(1)
hA = V.alloc(1); vZ = V.alloc(1); msk = V.alloc(2); AU = V.alloc(12, 2)
a.lg = []
G = V.alloc(8); gt = V.alloc(4); GA = [V.alloc(2, 2) for _ in range(8)]
jobs('jc', [jB2, jP, lambda: jT3(0), lambda: jT3(1)])
gate_partial()
a(f'''
s_mul_i32 {sE}, {sIdx}, {AT_S}
s_add_u32 {sE}, {sE}, {AT_B + 12288}
v_lshrrev_b32 {vt}, 2, v0
v_mul_u32_u24 {g1}, {T2_S}, {vt}
v_and_b32 {vt2}, 3, v0
v_lshl_add_u32 {g1}, {vt2}, 4, {g1}
v_add_u32 {w3}, 512, v0
v_min_u32 {w3}, 703, {w3}
v_lshrrev_b32 {vt}, 2, {w3}
v_mul_u32_u24 {g3}, {T2_S}, {vt}
v_and_b32 {vt2}, 3, {w3}
v_lshl_add_u32 {g3}, {vt2}, 4, {g3}
v_lshlrev_b32 {w3}, 4, {w3}
s_lshl_b32 {sK[0]}, {sIdx}, 6
s_add_u32 {sK[0]}, {sK[0]}, {T2_B}
s_add_u32 {sK[1]}, {sK[0]}, {64*T2_S}
s_mul_i32 {sK[2]}, {sIdx}, 48
s_add_u32 {sK[2]}, {sK[2]}, {AT_B}
v_mul_u32_u24 {aAr}, 48, v0
''')
for k in range(3):
    a(f'v_add_u32 {fb}, {256*k}, v0' if k else f'v_mov_b32 {fb}, v0')
    a(f'v_mul_u32_u24 {aA[k]}, 683, {fb}'); a(f'v_lshrrev_b32 {aA[k]}, 11, {aA[k]}')
    a(f'v_mul_u32_u24 {aA[k]}, {AT_S - 48}, {aA[k]}'); a(f'v_lshl_add_u32 {aA[k]}, {fb}, 4, {aA[k]}')
a(f'''
v_mov_b32 {vZ}, 0
buffer_load_dword {hA}, {vZ}, {sWS}, {sE} offen sc1
''')
a.barrier()
V.release(fl, fg, f1, fp1, rv, tc, ts, *o, gt, GW, X)
def p3_prep():
    for q in range(2):
        for c in range(2): a(f'ds_read_b128 {B1[q][c]}, {aL} offset:{TB["P%s%d" % ("ab"[q] , c)]}')
    for blk in range(2):
        a(f'ds_read_b128 {T3c[blk]}, {aL} offset:{TB["T3c%d" % blk]}'); a(f'ds_read_b128 {T3s[blk]}, {aL} offset:{TB["T3s%d" % blk]}')
        for db in range(2): a(f'ds_read_b128 {B2[blk][db]}, {aL} offset:{TB["B2%d%d" % (blk, db)]}')
    gate_final()
    V.release(G)
    a(f'''
    s_cmp_lg_u32 {sWave}, 0
    s_cbranch_scc1 L_nq
    v_bfe_i32 {msk[1]}, {vg}, 1, 1
    v_not_b32 {msk[0]}, {msk[1]}
    ''')
    lg_keep = list(a.lg)
    for c in range(2):
        for r in range(4):
            a(f'v_and_b32 {B1[1][c][r]}, {msk[1]}, {B1[0][c][r]}'); a(f'v_and_b32 {B1[0][c][r]}, {msk[0]}, {B1[0][c][r]}')
    a('L_nq:')
    a(f'''
    s_cmp_lg_u32 {sWave}, 0
    s_cselect_b32 {sC[0]}, 0x3580, 0
    s_cselect_b32 {sC[1]}, 0xb5800000, 0
    s_movk_i32 {sC[2]}, 0x3580
    s_cmov_b32 {sC[2]}, 0x35800000
    v_bfe_i32 {vt}, {l15}, 0, 1
    v_and_b32 {vt}, 0x80008000, {vt}
    v_add_u32 {vt2}, -1, {vg}
    v_ashrrev_i32 {vt2}, 31, {vt2}
    v_xor_b32 {AN[0][0]}, 0x3580, {vt}
    v_xor_b32 {AN[0][1]}, {sC[0]}, {vt}
    v_xor_b32 {AN[1][0]}, {sC[1]}, {vt}
    v_xor_b32 {AN[1][1]}, {sC[2]}, {vt}
    v_and_b32 {AN[0][0]}, {vt2}, {AN[0][0]}
    v_and_b32 {AN[0][1]}, {vt2}, {AN[0][1]}
    v_and_b32 {AN[1][0]}, {vt2}, {AN[1][0]}
    v_and_b32 {AN[1][1]}, {vt2}, {AN[1][1]}
    v_mov_b64 {AN[0][2:4]}, 0
    v_mov_b64 {AN[1][2:4]}, 0
    v_mov_b64 {NB[2:4]}, 0
    v_and_b32 {vt}, 1, {vg}
    v_lshl_add_u32 {vt}, {vt}, 7, {l15}
    v_lshrrev_b32 {vt2}, 1, {vg}
    v_mul_u32_u24 {vt2}, 1408, {vt2}
    s_mul_i32 {sT}, {sWave}, 2816
    v_add_u32 {vt2}, {sT}, {vt2}
    v_mov_b32 {aN}, {sT}
    ''')
    for j in range(3):
        if j: a(f'v_add_u32 {vt}, 16, {vt}')
        a(f'v_mul_u32_u24 {aF[j]}, 171, {vt}'); a(f'v_lshrrev_b32 {aF[j]}, 9, {aF[j]}')
        a(f'v_add_u32 {fb}, {vt}, {aF[j]}'); a(f'v_lshl_add_u32 {aF[j]}, {fb}, 2, {vt2}')
    a(f'''
    v_bfe_u32 {vt}, {l15}, 1, 2
    v_xor_b32 {vt}, {vt}, {vg}
    v_lshlrev_b32 {vt}, 4, {vt}
    v_lshl_add_u32 {aYw}, {l15}, 6, {vt}
    s_lshl_b32 {sT}, {sWave}, 12
    v_add_u32 {aYw}, {sT}, {aYw}
    v_lshrrev_b32 {vt}, 3, v0
    v_xor_b32 {vt2}, {vt}, v0
    v_and_b32 {vt2}, 6, {vt2}
    v_and_b32 {fb}, 1, v0
    v_or_b32 {vt2}, {vt2}, {fb}
    v_lshlrev_b32 {vt2}, 3, {vt2}
    v_lshl_add_u32 {aYr}, {vt}, 6, {vt2}
    ''')
if opt('prep3first', 0): p3_prep()
L3 = TU
loads = [f'buffer_load_dwordx4 {L3[0:4]}, {g1}, {sWS}, {sK[0]} offen sc1', f'buffer_load_dwordx4 {L3[4:8]}, {g1}, {sWS}, {sK[1]} offen sc1',
         f'buffer_load_dwordx4 {L3[8:12]}, {g3}, {sWS}, {sK[0]} offen sc1']
aloads = [f'buffer_load_dwordx4 {AU[4*u:4*u+4]}, {aA[u]}, {sWS}, {sK[2]} offen sc1' for u in range(3)]
AIMG = CT + 16384
def hint_wait(name, soff):
    a(f'''
    s_mov_b64 exec, 1
    s_mov_b32 {sSpin}, 0
    s_setprio 0
    v_mov_b32 {vt2}, 0
    L_{name}:
    buffer_load_dword {vt}, {vt2}, {sWS}, {soff} offen sc1
    s_add_u32 {sSpin}, {sSpin}, 1
    s_waitcnt vmcnt(0)
    v_cmp_ne_u32 vcc, {sTag}, {vt}
    s_cbranch_vccz L_{name}ok
    s_sleep {opt('slc', 4)}
    s_cmp_lt_u32 {sSpin}, {SPIN}
    s_cbranch_scc1 L_{name}
    L_{name}ok:
    s_setprio 3
    s_mov_b64 exec, -1
    ''')
a('s_waitcnt vmcnt(0)')
a(f'''
s_cmp_lt_u32 {sGrp}, 22
s_cbranch_scc1 L_t2go
s_mul_i32 {sT}, {sW8}, 22
s_add_u32 {sT}, {sT}, {sGrp}
s_sub_u32 {sT}, {sT}, 12
s_mul_i32 {sT}, {sT}, {T2_S}
s_add_u32 {sT}, {sT}, {T2_B + 16384}
''')
hint_wait('h2', sT)
a(f'buffer_load_dword {hA}, {vZ}, {sWS}, {sE} offen sc1'); a('s_waitcnt vmcnt(0)')
a('L_t2go:')
stamp()
emit(loads)
a(f'''
v_cmp_ne_u32 vcc, {sTag}, {hA}
s_mov_b32 {sE2}, 1
s_cbranch_vccnz L_alate
s_mov_b32 {sE2}, 0
''')
emit(aloads)
a('s_branch L_aiss'); a('L_alate:')
a(f'buffer_load_dword {hA}, {vZ}, {sWS}, {sE} offen sc1')
a('L_aiss:')
a.vm = []
if not opt('prep3first', 0): p3_prep()
a('s_setprio 3')
a(f's_cmp_eq_u32 {sE2}, 0'); a('s_cbranch_scc1 L_achk'); a('s_waitcnt vmcnt(0)'); a('L_achk:')
check_retry(loads, [L3[3], L3[7], L3[11]], vt, opt('sl2', 2), first=3, prio=3)
stamp(); stamp('z-got')
a(f'ds_write_b128 {aRd}, {L3[0:4]} offset:{T2IN}')
a(f'ds_write_b128 {aRd}, {L3[4:8]} offset:{T2IN + 4096}')
a(f'ds_write_b128 {w3}, {L3[8:12]} offset:{T2IN}')
a(f'''
v_cmp_ne_u32 vcc, {sTag}, {hA}
s_cmp_eq_u32 {sE2}, 0
s_cbranch_scc1 L_a2
s_cbranch_vccnz L_a2
s_mov_b32 {sE2}, 0
''')
emit(aloads)
a('L_a2:')
a.vm = []
stamp('z-prebar')
a.barrier()
stamp('z-bar')
AF = [L3[0:4], L3[4:8]]
for blk in range(2):
    for r in range(4):
        off = 16 * blk + 32 * r
        a(f'ds_read_b32 {AF[blk][r]}, {aF[(off % 48) // 16]} offset:{T2IN + 256 * (off // 48)}')
a(f'ds_read_b32 {NB[0]}, {aN} offset:{T2IN + 341*4}')
a(f'ds_read_b32 {NB[1]}, {aN} offset:{T2IN + 341*4 + 1408}')
Dre = [[V.alloc(4, 2) for b in range(2)] for q in range(2)]; Dim = [[V.alloc(4, 2) for b in range(2)] for q in range(2)]
VV = [V.alloc(4, 2) for b in range(2)]; Y = [[V.alloc(4, 2) for db in range(2)] for q in range(2)]
for blk in range(2):
    for q in range(2):
        a(mf16(Dre[q][blk], AF[blk], B1[q][0], 0)); a(mf16(Dim[q][blk], AF[blk], B1[q][1], 0))
stamp('z-st1')
gr = []
for q in range(2):
    for blk in range(2):
        tw = twiddle(Dre[q][blk], Dim[q][blk], T3c[blk], T3s[blk], tre, tim, VV[blk], +1)
        if blk == 0: tw = tw[:8] + [mf16(Y[q][db], AN[q], NB, 0) for db in range(2)] + tw[8:]
        elif q == 1: tw = tw[:8] + [f'ds_write_b128 {aYw}, {Y[0][db]} offset:{YROW + 1024*db}' for db in range(2)] + tw[8:]
        gr.append((tw, [mf16(Y[q][db], VV[blk], B2[blk][db], Y[q][db]) for db in range(2)]))
emit(pipe(gr))
stamp(); stamp('z-st2')
if OPT.get('only') == 'fft': a('s_waitcnt vmcnt(0)')
else:
    a(f's_cmp_eq_u32 {sE2}, 0'); a('s_cbranch_scc1 L_ago')
    hint_wait('h3', sE)
    emit(aloads)
    a('L_ago:')
    check_retry(aloads, [AU[3], AU[7], AU[11]], vt, opt('sl3', 4), prio=3)
stamp(); stamp('z-at')
for u in range(3): a(f'ds_write_b128 {aRd}, {AU[4*u:4*u+4]} offset:{AIMG + 4096*u}')
for db in range(2): a(f'ds_write_b128 {aYw}, {Y[1][db]} offset:{YROW + 2048 + 1024*db}')
stamp('z-pre2')
a.barrier()
stamp('z-bar2')
Rr = [V.alloc(2, 2) for _ in range(8)]
for q in (0, 1, 4, 5): a(f'ds_read_b64 {Rr[q]}, {aYr} offset:{YROW + 2048*q}')
for u in range(3): a(f'ds_read_b96 {AU[4*u:4*u+3]}, {aAr} offset:{AIMG + 16*u}')
for q in (2, 6, 3, 7): a(f'ds_read_b64 {Rr[q]}, {aYr} offset:{YROW + 2048*q}')
def ga(s):
    a(f'v_dot2_f32_bf16 {GA[s][0]}, {AU[s + s//3]}, {sGl[s]}, 0'); a(f'v_dot2_f32_bf16 {GA[s][1]}, {AU[s + s//3]}, {sG[s]}, 0')
R0, R4, A1, Bq1, A2, Bq2, A3, Bq3 = Rr
E = [V.alloc(2, 2) for _ in range(4)]; e0 = V.alloc(2, 2); e1 = V.alloc(2, 2); Oo = [V.alloc(2, 2) for _ in range(4)]; of = V.alloc(8)
yy = Rr
def fin(s):
    a(f'v_pk_fma_f32 {yy[s]}, {yy[s]}, {sOm[s & 6:(s & 6) + 2]}, {GA[s]} {"op_sel:[0,1,0]" if s & 1 else "op_sel_hi:[1,0,1]"}')
def fin2(s):
    a(f'v_cvt_pk_bf16_f32 {of[s]}, {yy[s][0]}, {yy[s][1]}')
    a(f'global_store_dword {vXo[s]}, {of[s]}, {sP[10:12]} {OPT.get("outfl", "").replace("+", " ")}')
a(f'''
v_pk_add_f32 {e0}, {R0}, {R4}
v_pk_add_f32 {e1}, {R0}, {R4} {NEG1}
v_pk_add_f32 {E[0]}, {e0}, {A2}
v_pk_add_f32 {E[2]}, {e0}, {A2} {NEG1}
v_pk_add_f32 {E[1]}, {e1}, {Bq2}
v_pk_add_f32 {E[3]}, {e1}, {Bq2} {NEG1}
''')
for s in (0, 4, 2, 6): ga(s)
a(f'''
v_pk_add_f32 {Oo[0]}, {A1}, {A3}
v_pk_add_f32 {e0}, {A1}, {A3} {NEG1}
v_pk_add_f32 {yy[0]}, {E[0]}, {Oo[0]}
v_pk_add_f32 {yy[4]}, {E[0]}, {Oo[0]} {NEG1}
''')
fin(0); fin(4)
a(f'v_pk_add_f32 {Oo[2]}, {Bq1}, {Bq3} {NEG1}'); a(f'v_pk_add_f32 {e1}, {Bq1}, {Bq3}')
fin2(0); fin2(4)
a(f'''
v_pk_add_f32 {yy[2]}, {E[2]}, {Oo[2]}
v_pk_add_f32 {yy[6]}, {E[2]}, {Oo[2]} {NEG1}
v_pk_add_f32 {Oo[1]}, {e1}, {e0}
v_pk_add_f32 {Oo[3]}, {e1}, {e0} {NEG1}
''')
fin(2); fin(6)
for s in (1, 5, 3, 7): ga(s)
a(f'''
v_pk_fma_f32 {yy[1]}, {Oo[1]}, {sHh}, {E[1]} op_sel_hi:[1,0,1]
v_pk_fma_f32 {yy[5]}, {Oo[1]}, {sHh}, {E[1]} op_sel_hi:[1,0,1] neg_lo:[1,0,0] neg_hi:[1,0,0]
''')
fin2(2); fin2(6)
a(f'''
v_pk_fma_f32 {yy[3]}, {Oo[3]}, {sHh}, {E[3]} op_sel_hi:[1,0,1]
v_pk_fma_f32 {yy[7]}, {Oo[3]}, {sHh}, {E[3]} op_sel_hi:[1,0,1] neg_lo:[1,0,0] neg_hi:[1,0,0]
''')
for s in (1, 5, 3, 7): fin(s)
for s in (1, 5, 3, 7): fin2(s)
stamp(); stamp('z-end')
fixwait()
a(f'''
s_or_b32 {sT}, s2, {sWave}
s_cmp_lg_u32 {sT}, 0
s_cbranch_scc1 L_fdone
v_mov_b32 {vt}, 0
s_mov_b64 exec, 1
buffer_store_dword {vTag}, {vt}, {sWS}, 0 offen
s_mov_b64 exec, -1
L_fdone:
''')
if STAMP:
    a('s_waitcnt vmcnt(0)'); stamp()
stamp_flush()
a('s_endpgm')
flush_tails()
nf = nstamp[0]
vmax = V.hi

exec(open('gen7_conv.py').read())

from asmlib import align_pass
if opt('al', 1): print('align', align_pass(a))
hdr = open('gated_mix__ssm_conv_s4__spectral_gfnet__prompt.s.ref').read().split('; Override launch')[0]
src = hdr + f'''; @launch grid=(512,1,1) block=(256,1,1) lds={LDS_BYTES}
; stampinfo ({nf}, {nstamp[0]}, {list(range(p2start, p2end))}, 4, {ST_B})
; Generated by dev/gen7.py (gen4 gen5 layout). One launch, 512 workgroups: ids 0..255 run the 2-D FFT filter path (three phases joined by
; tagged 16-byte hand-off units in d_ws), ids 256..511 build the S4 kernel and run the causal convolution on MFMA.
.amdgcn_target "amdgcn-amd-amdhsa--gfx950"
.text
.globl {KNAME}
.p2align 8
.type {KNAME},@function
{KNAME}:
''' + a.text() + f'''.section .rodata,"a"
.p2align 6
.amdhsa_kernel {KNAME}
  .amdhsa_next_free_vgpr {NV}
  .amdhsa_next_free_sgpr {102 if opt('fix') or STAMP else max(smax, 16)}
  .amdhsa_accum_offset {NV}
  .amdhsa_group_segment_fixed_size 0
  .amdhsa_kernarg_size 128
  .amdhsa_user_sgpr_count 2
  .amdhsa_user_sgpr_kernarg_segment_ptr 1
  .amdhsa_system_sgpr_workgroup_id_x 1
.end_amdhsa_kernel
'''
open(sys.argv[1], 'w').write(src)
print(snames)
print('vgpr hi', vmax, 'sgpr hi', smax, 'nops', a.nnop, 'lines', len(a.out))
```

```python
exec(open('gen7_head.py').read())

EARLYPF = f'''s_getpc_b64 {sPc}
L_pc0:
v_lshlrev_b32 v255, 7, v0
v_min_u32 v255, L_codeend-L_pc0-4, v255
global_load_dword v255, v255, {sPc}''' if opt('epf', 1) else ''
sP = S.alloc(16, 4)
a(f'''
L_codestart:
s_cmp_ge_u32 s2, 512
s_cbranch_scc1 L_end
{'s_memrealtime s[96:97]' if opt('fix') else ''}
{CLK + ' s[72:73]' if STAMP else ''}
{EARLYPF}
v_lshrrev_b32 v1, 6, v0
s_and_b32 {sW8}, s2, 7
v_readfirstlane_b32 {sWave}, v1
s_bfe_u32 {sT2}, s2, 0x50003
s_lshl_b32 {sIdx}, {sW8}, 5
s_add_u32 {sIdx}, {sIdx}, {sT2}
s_cmp_ge_u32 s2, 256
s_cbranch_scc1 L_conv
''')
nstamp[0] = 1 if STAMP else 0

V = Regs('v', 1, VTOP)
sX = S.alloc(2); sGl = S.alloc(8, 4); sWr = sGl[0:4]; sWi = sGl[4:8]
sGrp = S.alloc(1); sP1 = S.alloc(1); sHh = S.alloc(2); sK = S.alloc(4); sE2 = S.alloc(1); sC = S.alloc(3, 1)
sG = S.alloc(8); sOm = S.alloc(8, 2)
ROWS, T1IMG, GIN, T2IN = 0, 8192, 0, 0
CT = 19456
names = ['B1re0', 'B1re1', 'B1im0', 'B1im1', 'TWc0', 'TWc1', 'TWs0', 'TWs1',
         'M1', 'M2', 'M3', 'M4', 'MN1', 'MN2', 'Z1', 'Z2', 'Z3', 'Z4', 'ZN1', 'ZN2',
         'Pa0', 'Pa1', 'Pb0', 'Pb1', 'T3c0', 'T3c1', 'T3s0', 'T3s1', 'B200', 'B201', 'B210', 'B211',
         'S1re', 'S1im', 'S2re', 'S2im', 'S3re', 'S3im', 'S4re', 'S4im', 'T1c', 'T1s', 'T2c', 'T2s']
TB = {n: CT + 1024 * i for i, n in enumerate(names)}
T2IMG = YROW = CT
WIMG = CT; WPL = 256 * 48
GPART = CT + 1024 * len(names)
assert GPART + 128 <= LDS_BYTES
GIN_S = 3104

X = V.alloc(8); vXo = V.alloc(8)
vTl = V.alloc(1); vTag = V.alloc(1); GW = V.alloc(1); vT4 = V.alloc(1)
WR = V.alloc(8, 2); WI = V.alloc(8, 2); vWo = V.alloc(1)
l15 = V.alloc(1); vg = V.alloc(1); aL = V.alloc(1); vt = V.alloc(1); vt2 = V.alloc(1)
fl = V.alloc(1); fg = V.alloc(1); f1 = V.alloc(1); fb = V.alloc(1); fp1 = V.alloc(1)
rv = V.alloc(8, 2); tc = V.alloc(8, 2); ts = V.alloc(8, 2); o = [V.alloc(4, 2) for _ in range(4)]
if OPT.get('only') == 'conv': a('s_endpgm')
a(f'''
s_load_dwordx2 {sX}, s[0:1], 0
s_load_dwordx16 {sP}, s[0:1], 64
s_setprio {opt('pf0', 3)}
s_lshl_b32 {sT}, {sIdx}, 10
v_lshlrev_b32 {vT4}, 2, v0
v_add_u32 {vXo[0]}, {sT}, {vT4}
''')
for i in range(1, 8): a(f'v_add_u32 {vXo[i]}, {i*262144}, {vXo[0]}')
def xload():
    stamp('x-prek')
    a('s_waitcnt lgkmcnt(0)')
    stamp('x-karg')
    for s1 in (0, 4, 2, 6, 1, 5, 3, 7): a(f'global_load_dword {X[s1]}, {vXo[s1]}, {sX}')
    if WSO: a(f's_add_u32 {sP[14]}, {sP[14]}, {WSO}'); a(f's_addc_u32 {sP[15]}, {sP[15]}, 0')
    a(f'v_mov_b32 {vTag}, 0'); a(f'global_load_dword {vTag}, {vTag}, {sP[14:16]}')
    if opt('tlb'):
        a(f'v_mul_u32_u24 {vTl}, {opt("tlb")*4096}, v0'); a(f'v_min_u32 {vTl}, {WS_USED - 4096}, {vTl}')
        a(f'global_load_dword {vTl}, {vTl}, {sP[14:16]} offset:2048')
if opt('kfirst', 1): xload()
a(f'''
v_and_b32 {l15}, 15, v0
v_bfe_u32 {vg}, v0, 4, 2
v_and_b32 {aL}, 63, v0
v_cvt_f32_u32 {fl}, {l15}
v_cvt_f32_u32 {fg}, {vg}
v_lshlrev_b32 {aL}, 4, {aL}
v_mul_f32 {fg}, 4.0, {fg}
''')
def angles(dst, f, base, ks=(0, 1, 2, 3)):
    for r, k in enumerate(ks):
        if k == 0: continue
        elif k == 1: a(f'v_add_f32 {dst[r]}, {f}, {base}')
        else: a(f'v_fmamk_f32 {dst[r]}, {f}, {f2u(float(k))}, {base}')
def cossin(c, s, ang, n=4):
    for r in range(n):
        a(f'v_cos_f32 {c[r]}, {ang[r]}'); a(f'v_sin_f32 {s[r]}, {ang[r]}')
def put(name, reg): a(f'ds_write_b128 {aL}, {reg} offset:{TB[name]}')
def pack(dst, lo, hi):
    for r in range(4): a(f'v_cvt_pk_bf16_f32 {dst[r]}, {lo(r)}, {hi(r)}')
def jobs(tag, fns):
    vm, lg = list(a.vm), list(a.lg)
    a(f's_bitcmp1_b32 {sWave}, 1'); a(f's_cbranch_scc1 L_{tag}23')
    a(f's_bitcmp1_b32 {sWave}, 0'); a(f's_cbranch_scc1 L_{tag}1')
    for i, f in enumerate(fns):
        if i == 1: a(f'L_{tag}1:')
        if i == 2:
            a(f'L_{tag}23:'); a(f's_bitcmp1_b32 {sWave}, 0'); a(f's_cbranch_scc1 L_{tag}3')
        if i == 3: a(f'L_{tag}3:')
        f()
        if i < 3: a(f's_branch L_{tag}d')
        a.vm, a.lg = list(vm), list(lg)
    a(f'L_{tag}d:')
def jB1():
    a(f'v_mul_f32 {f1}, {f2u(1/32)}, {fl}'); a(f'v_mul_f32 {rv[0]}, {f1}, {fg}')
    angles(rv, f1, rv[0], [16 * (e >> 2) + (e & 3) for e in range(8)]); cossin(tc, ts, rv, 8)
    pack(o[0], lambda r: tc[2*r], lambda r: tc[2*r+1]); pack(o[1], lambda r: f'-{ts[2*r]}', lambda r: f'-{ts[2*r+1]}')
    put('B1re0', o[0]); put('B1im0', o[1])
    for r in range(4):
        a(f'v_xor_b32 {o[2][r]}, 0x80000000, {o[0][r]}'); a(f'v_xor_b32 {o[3][r]}, 0x80000000, {o[1][r]}')
    put('B1re1', o[2]); put('B1im1', o[3])
def jTW():
    for cb in range(2):
        if cb == 0: a(f'v_mul_f32 {f1}, {f2u(1/512)}, {fl}')
        else: a(f'v_add_f32 {f1}, {f2u(16/512)}, {f1}')
        a(f'v_mul_f32 {rv[4*cb]}, {f1}, {fg}'); angles(rv[4*cb:4*cb+4], f1, rv[4*cb])
    cossin(tc, ts, rv, 8)
    put('TWc0', tc[0:4]); put('TWc1', tc[4:8]); put('TWs0', ts[0:4]); put('TWs1', ts[4:8])
def jM():
    a(f'''
    v_lshrrev_b32 {f1}, 1, {l15}
    v_and_b32 {fb}, 1, {l15}
    v_cvt_f32_u32 {f1}, {f1}
    v_cvt_f32_u32 {fb}, {fb}
    v_mul_f32 {f1}, {f2u(1/16)}, {f1}
    v_mul_f32 {rv[0]}, {f2u(0.25)}, {fb}
    v_fmac_f32 {rv[0]}, {f1}, {fg}
    ''')
    angles(rv, f1, rv[0]); cossin(tc, ts, rv)
    pack(o[0], lambda r: tc[r], lambda r: ts[r]); pack(o[1], lambda r: ts[r], lambda r: f'-{tc[r]}'); pack(o[2], lambda r: f'-{ts[r]}', lambda r: tc[r])
    put('M1', o[0]); put('M2', o[1]); put('M3', o[0]); put('M4', o[2]); put('Z1', o[0]); put('Z4', o[0])
def jMN():
    a(f'v_add_u32 {fb}, {l15}, {l15}')
    for k, code in enumerate((0x11, 0xc4, 0x01, 0x10)):
        a(f's_movk_i32 {sT}, {code}'); a(f'v_bfe_i32 {tc[k]}, {sT}, {fb}, 2'); a(f'v_cvt_f32_i32 {tc[k]}, {tc[k]}')
    for r in range(4): a(f'v_mov_b32 {rv[r]}, 0')
    put('Z2', rv[0:4]); put('Z3', rv[0:4])
    for k, n in enumerate(('MN1', 'MN2', 'ZN1', 'ZN2')):
        a(f'v_lshrrev_b32 {o[k][0]}, 16, {tc[k]}'); a(f'v_lshrrev_b32 {o[k][2]}, 16, {tc[k]}')
        a(f'v_xor_b32 {o[k][1]}, 0x8000, {o[k][0]}'); a(f'v_xor_b32 {o[k][3]}, 0x8000, {o[k][0]}')
        put(n, o[k])
jobs('ja', [jB1, jTW, jM, jMN])
if not opt('kfirst', 1): xload()
else: a('s_waitcnt lgkmcnt(0)')
a('s_barrier')
stamp(); stamp('x-ld')
B1re = [V.alloc(4, 2) for _ in range(2)]; B1im = [V.alloc(4, 2) for _ in range(2)]
TWc = [V.alloc(4, 2) for _ in range(2)]; TWs = [V.alloc(4, 2) for _ in range(2)]
MM = [V.alloc(4, 2) for _ in range(6)]
aTk = V.alloc(4); aNy = V.alloc(1); aTr = V.alloc(1); aRd = V.alloc(1); vSt3 = V.alloc(1)
TU = V.alloc(12, 2)
a(f'''
s_cmp_eq_u32 {sWave}, 0
s_cselect_b32 {sT}, 6144, 0
v_add_u32 {vt}, {sT}, {aL}
''')
for cb in range(2):
    a(f'ds_read_b128 {B1re[cb]}, {aL} offset:{TB["B1re%d" % cb]}'); a(f'ds_read_b128 {B1im[cb]}, {aL} offset:{TB["B1im%d" % cb]}')
for cb in range(2):
    a(f'ds_read_b128 {TWc[cb]}, {aL} offset:{TB["TWc%d" % cb]}'); a(f'ds_read_b128 {TWs[cb]}, {aL} offset:{TB["TWs%d" % cb]}')
for k in range(6): a(f'ds_read_b128 {MM[k]}, {vt} offset:{TB["M1"] + 1024*k}')
a(f'''
s_lshr_b32 {sGrp}, s2, 3
s_lshr_b32 {sP1}, {sW8}, 1
s_sub_u32 {sT}, 0, {sP1}
s_cmp_eq_u32 {sW8}, 1
s_cselect_b32 {sT}, 4, {sT}
s_bitcmp1_b32 {sW8}, 0
s_cselect_b32 {sP1}, {sT}, {sP1}
s_mov_b64 {sWr[0:2]}, {sP[4:6]}
s_mov_b32 {sWr[2]}, 1052672
s_mov_b32 {sWr[3]}, 0x20000
s_mov_b64 {sWi[0:2]}, {sP[6:8]}
s_mov_b32 {sWi[2]}, 1052672
s_mov_b32 {sWi[3]}, 0x20000
global_load_dword {GW}, {vT4}, {sP[8:10]}
s_cmp_lg_u32 {sWave}, 3
s_cbranch_scc1 L_nwp
v_bfe_u32 {vt}, v0, 3, 3
s_lshl_b32 {sT}, {sGrp}, 6
s_add_u32 {sT}, {sT}, {sP1}
v_lshl_add_u32 {vt}, {vt}, 3, {sT}
v_and_b32 {vt}, 2047, {vt}
v_mul_u32_u24 {vt}, 514, {vt}
v_and_b32 {vt2}, 7, v0
v_min_u32 {vt2}, 4, {vt2}
v_lshl_add_u32 {vt}, {vt2}, 7, {vt}
v_and_b32 {vt}, -4, {vt}
buffer_load_dword {WR[0]}, {vt}, {sWr}, 0 offen
buffer_load_dword {WI[0]}, {vt}, {sWi}, 0 offen
L_nwp:
s_mov_b32 {sHh[0]}, {f2u(math.sqrt(0.5))}
s_lshl_b32 {sT}, {sWave}, 11
v_lshrrev_b32 {aTr}, 1, {aL}
v_add_u32 {aTr}, {sT}, {aTr}
''')
a.vm = a.vm[:-2]
stamp(); stamp('x-rdy')
P = [V.alloc(2, 2) for _ in range(8)]; A_ = [V.alloc(2, 2) for _ in range(8)]; O = V.alloc(8)
for i in (0, 2, 1, 3):
    for s in (i, i + 4):
        a(f'v_lshlrev_b32 {P[s][0]}, 16, {X[s]}'); a(f'v_and_b32 {P[s][1]}, 0xffff0000, {X[s]}')
    a(f'v_pk_add_f32 {A_[i]}, {P[i]}, {P[i+4]}'); a(f'v_pk_add_f32 {A_[i+4]}, {P[i]}, {P[i+4]} {NEG1}')
aa, bb = A_[:4], A_[4:]
c0, c1, Re2, Im2, t1, t2, Ra, Rb = P
def row_out(q, src):
    a(f'v_cvt_pk_bf16_f32 {O[q]}, {src[0]}, {src[1]}')
    a(f'ds_write_b32 {vT4}, {O[q]} offset:{ROWS + q*1024}')
a(f'''
v_pk_add_f32 {Re2}, {aa[0]}, {aa[2]} {NEG1}
v_pk_add_f32 {Im2}, {aa[3]}, {aa[1]} {NEG1}
v_pk_add_f32 {c0}, {aa[0]}, {aa[2]}
v_pk_add_f32 {c1}, {aa[1]}, {aa[3]}
''')
row_out(4, Re2)
a(f'v_pk_add_f32 {t1}, {bb[1]}, {bb[3]} {NEG1}'); a(f'v_pk_add_f32 {t2}, {bb[1]}, {bb[3]}')
row_out(5, Im2)
a(f'v_pk_add_f32 {Ra}, {c0}, {c1}'); a(f'v_pk_add_f32 {Rb}, {c0}, {c1} {NEG1}')
a(f'''
v_pk_fma_f32 {aa[0]}, {t1}, {sHh}, {bb[0]} op_sel_hi:[1,0,1]
v_pk_fma_f32 {aa[1]}, {t2}, {sHh}, {bb[2]} op_sel_hi:[1,0,1] neg_lo:[1,0,1] neg_hi:[1,0,1]
v_pk_fma_f32 {aa[2]}, {t1}, {sHh}, {bb[0]} op_sel_hi:[1,0,1] neg_lo:[1,0,0] neg_hi:[1,0,0]
v_pk_fma_f32 {aa[3]}, {t2}, {sHh}, {bb[2]} op_sel_hi:[1,0,1] neg_lo:[1,0,0] neg_hi:[1,0,0]
''')
row_out(0, Ra); row_out(1, Rb); row_out(2, aa[0]); row_out(3, aa[1]); row_out(6, aa[2]); row_out(7, aa[3])
stamp('x-p1a')
a.barrier()
stamp(); stamp('x-bar')
V.release(*P, *A_, O)
AF = [V.alloc(4, 2) for _ in range(2)]
for q in range(2):
    for i in range(2): a(f'ds_read_b64_tr_b16 {AF[q][2*i:2*i+2]}, {aTr} offset:{ROWS + q*1024 + i*512}')
a(f'''
s_mul_i32 {sT}, {sWave}, 2816
s_add_u32 {sT}, {sT}, {T1IMG}
v_lshl_add_u32 {vt}, {vg}, 6, {l15}
''')
def tk(n):
    if n: a(f'v_add_u32 {vt}, 16, {vt}')
    a(f'v_mul_u32_u24 {aTk[n]}, 171, {vt}'); a(f'v_lshrrev_b32 {aTk[n]}, 9, {aTk[n]}')
    a(f'v_add_u32 {fb}, {vt}, {aTk[n]}'); a(f'v_lshl_add_u32 {aTk[n]}, {fb}, 2, {sT}')
tk(0); tk(1)
Dre = [[V.alloc(4, 2) for cb in range(2)] for q in range(2)]; Dim = [[V.alloc(4, 2) for cb in range(2)] for q in range(2)]
for q in range(2):
    for cb in range(2):
        a(mf16(Dre[q][cb], AF[q], B1re[cb], 0)); a(mf16(Dim[q][cb], AF[q], B1im[cb], 0))
    if q == 0: tk(2); tk(3)
a(f'''
v_min_u32 {aNy}, 4, {aL}
v_add_u32 {aNy}, {sT}, {aNy}
''')
tt = V.alloc(10, 2); tre = tt[1:5]; tim = tt[5:9]
V.release(tt[0], tt[9])
BQ = [V.alloc(4, 2) for _ in range(2)]
F = [[V.alloc(4, 2) for cb in range(2)] for s in range(2)]; FN = V.alloc(4, 2)
extra = [f's_mov_b32 {sT2}, 0x9E3779B1', f'v_mul_lo_u32 {vTag}, {vTag}, {sT2}', f'v_add_u32 {vTag}, 0x7F4A7C15, {vTag}', f'v_lshlrev_b32 {aRd}, 4, v0']
def pipe(groups):
    held = []
    for v, m in groups:
        emit(v[:2]); emit(held); emit(v[2:]); held = m
    return held
gr = []
for q in range(2):
    for cb in range(2):
        m = [mf16(F[s][cb], MM[2*s+q], BQ[cb], 0 if q == 0 else F[s][cb]) for s in range(2)]
        if cb == 0: m.append(mf16(FN, MM[4+q], BQ[0], 0 if q == 0 else FN))
        gr.append((twiddle(Dre[q][cb], Dim[q][cb], TWc[cb], TWs[cb], tre, tim, BQ[cb], -1), m))
held = pipe(gr)
emit(extra[:2]); emit(held); emit(extra[2:])
o2 = V.alloc(10)
def outk(cb):
    for s in range(2):
        for j in range(2):
            oo = o2[4*cb + 2*s + j]
            a(f'v_cvt_pk_bf16_f32 {oo}, {F[s][cb][2*j]}, {F[s][cb][2*j+1]}')
            a(f'ds_write_b32 {aTk[cb + 2*j]}, {oo} offset:{1408*s}')
outk(0)
for s in range(2):
    a(f'v_cvt_pk_bf16_f32 {o2[8+s]}, {FN[2*s]}, {FN[2*s+1]}'); a(f'ds_write_b32 {aNy}, {o2[8+s]} offset:{341*4 + 1408*s}')
outk(1)
a(f'''
v_readfirstlane_b32 {sTag}, {vTag}
v_mov_b32 {TU[3]}, {vTag}
v_mov_b32 {TU[7]}, {vTag}
v_mov_b32 {TU[11]}, {vTag}
''')
stamp('x-p1b')
a.barrier()
stamp('x-bar2')
for i in range(3): a(f'ds_read_b96 {TU[4*i:4*i+3]}, {aRd} offset:{T1IMG + 4096*i}')
a(f'''
s_mov_b64 {sWS[0:2]}, {sP[14:16]}
s_mov_b32 {sWS[2]}, {WS_USED if not STAMP else 0x1000000}
s_mov_b32 {sWS[3]}, 0x20000
s_mul_i32 {sT}, {sIdx}, {T1_S}
s_add_u32 {sK[0]}, {sT}, {T1_B}
s_add_u32 {sK[1]}, {sK[0]}, 4096
s_add_u32 {sK[2]}, {sK[0]}, 8192
s_cmp_eq_u32 {sWave}, 3
s_cmov_b32 {sK[2]}, 0x40000000
''')
for i in range(3): a(f'buffer_store_dwordx4 {TU[4*i:4*i+4]}, {aRd}, {sWS}, {sK[i]} offen sc1')
a(f's_setprio {opt("plo", 1)}')
stamp(); stamp('x-st')
V.release(*AF, *Dre[0], *Dre[1], *Dim[0], *Dim[1], *BQ, *F[0], *F[1], FN, o2, *B1re, *B1im, *TWc, *TWs, *MM, aTk, aNy, aTr, vSt3)

a(f'v_cvt_f32_i32 {fp1}, {sP1}')
def jS1():
    a(f'v_fmamk_f32 {f1}, {fl}, {f2u(8.0)}, {fp1}'); a(f'v_mul_f32 {f1}, {f2u(1/128)}, {f1}'); a(f'v_mul_f32 {rv[0]}, {f1}, {fg}')
    angles(rv, f1, rv[0])
    for r in range(4): a(f'v_mul_f32 {rv[4+r]}, {f2u(1/16)}, {rv[r]}')
    cossin(tc, ts, rv, 8)
    pack(o[0], lambda r: tc[r], lambda r: ts[r]); pack(o[1], lambda r: f'-{ts[r]}', lambda r: tc[r])
    put('S1re', o[0]); put('S1im', o[1]); put('T1c', tc[4:8]); put('T1s', ts[4:8])
def jS2():
    a(f'v_mul_f32 {f1}, {f2u(1/16)}, {fl}'); a(f'v_mul_f32 {rv[0]}, {f1}, {fg}'); angles(rv, f1, rv[0]); cossin(tc, ts, rv)
    pack(o[0], lambda r: tc[r], lambda r: ts[r]); pack(o[1], lambda r: f'-{ts[r]}', lambda r: tc[r])
    put('S2re', o[0]); put('S2im', o[1])
    for r in range(4):
        a(f'v_xor_b32 {o[2][r]}, 0x80000000, {o[0][r]}'); a(f'v_xor_b32 {o[3][r]}, 0x8000, {o[1][r]}')
    put('S3re', o[2]); put('S3im', o[3])
def jP():
    a(f'''
    v_and_b32 {fb}, 1, {vg}
    v_mul_f32 {f1}, {f2u(1/16)}, {fl}
    v_cvt_f32_u32 {fb}, {fb}
    v_mul_f32 {fb}, 4.0, {fb}
    v_mul_f32 {rv[0]}, {fb}, {f1}
    v_bfe_i32 {vt}, {vg}, 1, 1
    v_and_b32 {vt}, 0x80008000, {vt}
    v_xor_b32 {vt2}, 0x80008000, {vt}
    ''')
    angles(rv, f1, rv[0]); cossin(tc, ts, rv)
    pack(o[0], lambda r: tc[r], lambda r: f'-{ts[r]}'); pack(o[1], lambda r: ts[r], lambda r: tc[r])
    put('Pa0', o[0]); put('Pa1', o[1])
    for r in range(4):
        a(f'v_xor_b32 {o[2][r]}, {vt2}, {o[1][r]}'); a(f'v_xor_b32 {o[3][r]}, {vt}, {o[0][r]}')
    put('Pb0', o[2]); put('Pb1', o[3])
def jB2():
    a(f'v_mul_f32 {f1}, {f2u(1/32)}, {fl}'); a(f'v_mul_f32 {rv[0]}, {f1}, {fg}')
    angles(rv, f1, rv[0]); cossin(tc, ts, rv)
    a(f'v_bfe_i32 {vt}, {l15}, 0, 1'); a(f'v_and_b32 {vt}, 0x80008000, {vt}')
    pack(o[0], lambda r: tc[r], lambda r: f'-{ts[r]}')
    for r in range(4):
        a(f'v_xor_b32 {o[2][r]}, {vt}, {o[0][r]}'); a(f'v_xor_b32 {o[1][r]}, {"0x80008000" if r & 1 else 0}, {o[0][r]}')
    for r in range(4): a(f'v_xor_b32 {o[3][r]}, {vt}, {o[1][r]}')
    put('B200', o[0]); put('B201', o[1]); put('B210', o[2]); put('B211', o[3])
def jS4():
    a(f'''
    v_fmamk_f32 {fb}, {fg}, {f2u(8.0)}, {fp1}
    v_mul_f32 {f1}, {f2u(1/16)}, {fl}
    v_mul_f32 {fb}, {fb}, {fl}
    v_mul_f32 {rv[0]}, {f2u(1/128)}, {fb}
    ''')
    angles(rv, f1, rv[0])
    for r in range(4): a(f'v_mul_f32 {rv[4+r]}, {f2u(1/16)}, {rv[r]}')
    cossin(tc, ts, rv, 8)
    pack(o[0], lambda r: tc[r], lambda r: f'-{ts[r]}'); pack(o[1], lambda r: ts[r], lambda r: tc[r])
    put('S4re', o[0]); put('S4im', o[1]); put('T2c', tc[4:8]); put('T2s', ts[4:8])
def jT3(blk):
    a(f'v_mul_f32 {f1}, {f2u(1/512)}, {fl}')
    if blk: a(f'v_add_f32 {fb}, {f2u(16.0)}, {fg}')
    a(f'v_mul_f32 {rv[0]}, {f1}, {fb if blk else fg}')
    angles(rv, f1, rv[0]); cossin(tc, ts, rv)
    for e in range(4):
        a(f'v_mul_f32 {tc[e]}, {f2u(2.0**-19)}, {tc[e]}'); a(f'v_mul_f32 {ts[e]}, {f2u(2.0**-19)}, {ts[e]}')
    put(f'T3c{blk}', tc[0:4]); put(f'T3s{blk}', ts[0:4])
def gate_partial():
    for s in range(8): a(f'v_dot2_f32_bf16 {G[s]}, {X[s]}, {GW}, 0')
    a(f's_lshl_b32 {sT}, {sWave}, 5'); a(f's_add_u32 {sT}, {sT}, {GPART}')
    for i in range(4): a(f'v_add_f32_dpp {gt[i]}, {G[2*i]}, {G[2*i]} row_ror:4 row_mask:0xf bank_mask:0x5')
    for i in range(4): a(f'v_add_f32_dpp {gt[i]}, {G[2*i+1]}, {G[2*i+1]} row_ror:4 row_mask:0xf bank_mask:0xa')
    for i in range(2): a(f'v_add_f32_dpp {G[i]}, {gt[2*i]}, {gt[2*i]} row_ror:8 row_mask:0xf bank_mask:0x3')
    a(f'v_and_b32 {G[2]}, 28, v0')
    for i in range(2): a(f'v_add_f32_dpp {G[i]}, {gt[2*i+1]}, {gt[2*i+1]} row_ror:8 row_mask:0xf bank_mask:0xc')
    a(f'''
    v_add_u32 {G[2]}, {sT}, {G[2]}
    v_permlane16_swap_b32 {G[0]}, {G[1]}
    v_add_f32 {G[0]}, {G[0]}, {G[1]}
    v_mov_b32 {G[1]}, {G[0]}
    v_permlane32_swap_b32 {G[0]}, {G[1]}
    v_add_f32 {G[0]}, {G[0]}, {G[1]}
    v_add_f32_dpp {G[0]}, {G[0]}, {G[0]} quad_perm:[1,0,3,2] row_mask:0xf bank_mask:0xf
    v_add_f32_dpp {G[0]}, {G[0]}, {G[0]} quad_perm:[2,3,0,1] row_mask:0xf bank_mask:0xf
    ds_write_b32 {G[2]}, {G[0]}
    ''')
def gate_final():
    a(f'''
    v_and_b32 {G[2]}, 7, v0
    v_lshlrev_b32 {G[2]}, 2, {G[2]}
    v_add_u32 {G[2]}, {GPART}, {G[2]}
    ds_read2_b32 {G[4:6]}, {G[2]} offset1:8
    ds_read2_b32 {G[6:8]}, {G[2]} offset0:16 offset1:24
    v_add_f32 {G[4]}, {G[4]}, {G[5]}
    v_add_f32 {G[6]}, {G[6]}, {G[7]}
    v_add_f32 {G[0]}, {G[4]}, {G[6]}
    v_mul_f32 {G[0]}, {f2u(-1/math.log(2))}, {G[0]}
    v_exp_f32 {G[0]}, {G[0]}
    v_add_f32 {G[0]}, 1.0, {G[0]}
    v_rcp_f32 {G[0]}, {G[0]}
    v_cvt_pk_bf16_f32 {G[0]}, {G[0]}, {G[0]}
    v_and_b32 {G[1]}, 0xffff0000, {G[0]}
    v_sub_f32 {G[2]}, 1.0, {G[1]}
    ''')
    for s in range(8):
        a(f'v_readlane_b32 {sG[s]}, {G[1]}, {s}'); a(f'v_readlane_b32 {sOm[s]}, {G[2]}, {s}')
    for s in range(8): a(f's_lshr_b32 {sGl[s]}, {sG[s]}, 16')
a('s_waitcnt vmcnt(3)')
a(f's_cmp_ge_u32 {sGrp}, 22'); a('s_cbranch_scc1 L_p3')
p2start = nstamp[0]
Sm = {n: V.alloc(4, 2) for n in ('S1re', 'S1im', 'S2re', 'S2im', 'S3re', 'S3im', 'S4re', 'S4im', 'T1c', 'T1s', 'T2c', 'T2s')}
Wc = [V.alloc(4, 2) for _ in range(3)]; Ws = [V.alloc(4, 2) for _ in range(3)]
aG = V.alloc(1); aGw = V.alloc(1); aGr = V.alloc(1); aUw = V.alloc(1); aUr = V.alloc(1); aWq = V.alloc(1)
L = V.alloc(16, 2); UU = V.alloc(16, 2)
a(f'''
v_lshrrev_b32 {vt}, 1, v0
v_lshl_add_u32 {vWo}, {vt}, 3, {sP1}
v_add_u32 {vt2}, 1024, {vWo}
v_and_b32 {vWo}, 2047, {vWo}
v_mul_u32_u24 {vWo}, 514, {vWo}
v_mul_u32_u24 {vt2}, 514, {vt2}
v_and_b32 {aWq}, 1, v0
v_lshlrev_b32 {aWq}, 4, {aWq}
v_and_b32 {vWo}, -4, {vWo}
v_and_b32 {vt2}, -4, {vt2}
v_add_u32 {vWo}, {vWo}, {aWq}
v_add_u32 {vt2}, {vt2}, {aWq}
s_mul_i32 {sT}, {sGrp}, 24
buffer_load_dwordx4 {WR[0:4]}, {vWo}, {sWr}, {sT} offen
buffer_load_dwordx4 {WI[0:4]}, {vWo}, {sWi}, {sT} offen
buffer_load_dwordx4 {WR[4:8]}, {vt2}, {sWr}, {sT} offen
buffer_load_dwordx4 {WI[4:8]}, {vt2}, {sWi}, {sT} offen
v_mad_u32_u24 {vWo}, {vt}, 48, {aWq}
''')
jobs('jb', [jS1, jS2, jS4, lambda: None])
a(f'''
v_bfe_u32 {vt}, v0, 2, 4
v_mul_u32_u24 {aG}, {T1_S}, {vt}
v_and_b32 {vt}, 3, v0
v_lshl_add_u32 {aG}, {vt}, 4, {aG}
s_mul_i32 {sT}, {sW8}, 22
s_add_u32 {sT}, {sT}, {sGrp}
s_mul_i32 {sT2}, {sWave}, {64*T1_S}
s_lshl_b32 {sK[0]}, {sT}, 6
s_add_u32 {sK[0]}, {sK[0]}, {sT2}
s_add_u32 {sK[0]}, {sK[0]}, {T1_B}
s_add_u32 {sK[1]}, {sK[0]}, {16*T1_S}
s_add_u32 {sK[2]}, {sK[0]}, {32*T1_S}
s_add_u32 {sK[3]}, {sK[0]}, {48*T1_S}
s_mul_i32 {sE}, {sT}, {T2_S}
s_add_u32 {sE}, {sE}, {T2_B}
''')
stamp()
loads = [f'buffer_load_dwordx4 {L[4*i:4*i+4]}, {aG}, {sWS}, {sK[i]} offen sc1' for i in range(4)]
def p2_prep_a():
    for n in ('S1re', 'S1im', 'T1c', 'T1s', 'S2re', 'S2im', 'S3re', 'S3im', 'T2c', 'T2s', 'S4re', 'S4im'):
        a(f'ds_read_b128 {Sm[n]}, {aL} offset:{TB[n]}')
    a(f'''
    v_mul_u32_u24 {aGw}, {GIN_S}, {vt}
    v_lshrrev_b32 {vt2}, 2, v0
    v_lshl_add_u32 {aGw}, {vt2}, 4, {aGw}
    s_mul_i32 {sT}, {sWave}, {GIN_S}
    v_add_u32 {aGr}, {sT}, {aL}
    v_lshrrev_b32 {aUr}, 3, v0
    v_add_u32 {aUr}, {aUr}, v0
    v_and_b32 {aUr}, 3, {aUr}
    v_lshlrev_b32 {aUr}, 4, {aUr}
    v_lshl_add_u32 {aUr}, {vt2}, 6, {aUr}
    v_lshl_add_u32 {vt2}, {vg}, 6, {l15}
    v_mul_u32_u24 {aWq}, 48, {vt2}
    s_mul_i32 {sT}, {sWave}, 3
    s_and_b32 {sT2}, {sP1}, 1
    s_add_u32 {sT}, {sT}, {sT2}
    s_lshl_b32 {sT}, {sT}, 1
    s_add_u32 {sT}, {sT}, {WIMG}
    v_add_u32 {aWq}, {sT}, {aWq}
    v_lshrrev_b32 {aUw}, 1, {l15}
    v_add_u32 {aUw}, {sWave}, {aUw}
    v_and_b32 {aUw}, 3, {aUw}
    v_lshlrev_b32 {aUw}, 4, {aUw}
    v_lshl_add_u32 {aUw}, {vt2}, 6, {aUw}
    ''')
    for k in range(3):
        for r in (0, 2): a(f'v_mov_b64 {Wc[k][r:r+2]}, 0'); a(f'v_mov_b64 {Ws[k][r:r+2]}, 0')
    for r in range(4): a(f'v_mov_b32 {UU[4*r+3]}, {vTag}')
a.barrier()
p2_prep_a()
a('s_waitcnt vmcnt(4)')
stamp()
emit(loads)
for h_ in range(2):
    a(f'ds_write_b128 {vWo}, {WR[4*h_:4*h_+4]} offset:{WIMG + 6144*h_}'); a(f'ds_write_b128 {vWo}, {WI[4*h_:4*h_+4]} offset:{WIMG + WPL + 6144*h_}')
V.release(WR, WI, vWo)
a.barrier()
for k in range(3):
    for r in range(4):
        a(f'ds_read_u16_d16_hi {Wc[k][r]}, {aWq} offset:{768*r + 2*k}')
        a(f'ds_read_u16_d16_hi {Ws[k][r]}, {aWq} offset:{WPL + 768*r + 2*k}')
a(f'''
s_or_b32 {sT}, {sGrp}, {sWave}
s_cmp_eq_u32 {sT}, 0
s_cselect_b32 {sT}, 0.5, 1.0
''')
for r in range(4): a(f'v_mul_f32 {Wc[0][r]}, {sT}, {Wc[0][r]}'); a(f'v_mul_f32 {Ws[0][r]}, {sT}, {Ws[0][r]}')
a('s_setprio 3')
check_retry(loads, [L[4*i+3] for i in range(4)], vt, opt('sl1', 2), prio=3)
stamp(); stamp('y-got')
for i in range(3):
    for j in range(i + 1, 4):
        if j == 3: a(f'v_mov_b32 {L[4*i+3]}, {L[12+i]}')
        else: a(f'v_swap_b32 {L[4*i+j]}, {L[4*j+i]}')
    a(f'ds_write_b128 {aGw}, {L[4*i:4*i+4]} offset:{GIN + 1024*i}')
stamp('y-pre')
a.barrier()
stamp('y-bar')
for k in range(3): a(f'ds_read_b128 {L[4*k:4*k+4]}, {aGr} offset:{GIN + 1024*k}')
D1 = [V.alloc(4, 2) for _ in range(3)]; D2 = [V.alloc(4, 2) for _ in range(3)]
Z = [L[4*k:4*k+4] for k in range(3)]
for k in range(3):
    a(mf16(D1[k], Z[k], Sm['S1re'], 0)); a(mf16(D2[k], Z[k], Sm['S1im'], 0))
gr = []
for k in range(3): gr.append((twiddle(D1[k], D2[k], Sm['T1c'], Sm['T1s'], tre, tim, Z[k], -1), [mf16(D1[k], Sm['S2re'], Z[k], 0), mf16(D2[k], Sm['S2im'], Z[k], 0)]))
for k in range(3): gr.append((twiddle(D1[k], D2[k], Wc[k], Ws[k], tre, tim, Z[k], +1), [mf16(D1[k], Z[k], Sm['S3re'], 0), mf16(D2[k], Z[k], Sm['S3im'], 0)]))
for k in range(3): gr.append((twiddle(D1[k], D2[k], Sm['T2c'], Sm['T2s'], tre, tim, Z[k], +1), [mf16(D1[k], Sm['S4re'], Z[k], 0), mf16(D2[k], Sm['S4im'], Z[k], 0)]))
held = pipe(gr)
for r in range(2): a(f'v_cvt_pk_bf16_f32 {UU[4*r]}, {D1[0][r]}, {D2[0][r]}')
emit(held)
stamp('y-s4')
for k in range(3):
    for r in range(4):
        if k == 0 and r < 2: continue
        a(f'v_cvt_pk_bf16_f32 {UU[4*r+k]}, {D1[k][r]}, {D2[k][r]}')
        if k == 2: a(f'ds_write_b128 {aUw}, {UU[4*r:4*r+4]} offset:{T2IMG + 1024*r}')
stamp('y-wr')
a.barrier()
stamp('y-bar2')
for i in range(4): a(f'ds_read_b128 {UU[4*i:4*i+4]}, {aUr} offset:{T2IMG + 4096*i}')
a(f'''
s_add_u32 {sK[1]}, {sE}, 4096
s_add_u32 {sK[2]}, {sE}, 8192
s_add_u32 {sK[3]}, {sE}, 12288
''')
for i in range(4): a(f'buffer_store_dwordx4 {UU[4*i:4*i+4]}, {aRd}, {sWS}, {sK[i] if i else sE} offen sc1')
a(f'''
s_cmp_lg_u32 {sWave}, 3
s_cbranch_scc1 L_p3
s_mov_b64 exec, 1
s_add_u32 {sT}, {sE}, 16384
v_mov_b32 {vt}, 0
buffer_store_dword {vTag}, {vt}, {sWS}, {sT} offen sc1
s_mov_b64 exec, -1
L_p3:
''')
a(f's_setprio {opt("plo2", 3)}')
p2end = nstamp[0]
stamp(); stamp('y-st')
V.release(*Sm.values(), *Wc, *Ws, aG, aGw, aGr, aUw, aUr, aWq, *D1, *D2, UU, L)
B1 = [[V.alloc(4, 2) for c in range(2)] for q in range(2)]
T3c = [V.alloc(4, 2) for _ in range(2)]; T3s = [V.alloc(4, 2) for _ in range(2)]
B2 = [[V.alloc(4, 2) for db in range(2)] for blk in range(2)]; AN = [V.alloc(4, 2) for q in range(2)]; NB = V.alloc(4, 2)
g1 = V.alloc(1); g3 = V.alloc(1); w3 = V.alloc(1); aA = V.alloc(3); aAr = V.alloc(1); aF = V.alloc(3); aN = V.alloc(1); aYw = V.alloc(1); aYr = V.alloc(1)
hA = V.alloc(1); vZ = V.alloc(1); msk = V.alloc(2); AU = V.alloc(12, 2)
a.lg = []
G = V.alloc(8); gt = V.alloc(4); GA = [V.alloc(2, 2) for _ in range(8)]
jobs('jc', [jB2, jP, lambda: jT3(0), lambda: jT3(1)])
gate_partial()
a(f'''
s_mul_i32 {sE}, {sIdx}, {AT_S}
s_add_u32 {sE}, {sE}, {AT_B + 12288}
v_lshrrev_b32 {vt}, 2, v0
v_mul_u32_u24 {g1}, {T2_S}, {vt}
v_and_b32 {vt2}, 3, v0
v_lshl_add_u32 {g1}, {vt2}, 4, {g1}
v_add_u32 {w3}, 512, v0
v_min_u32 {w3}, 703, {w3}
v_lshrrev_b32 {vt}, 2, {w3}
v_mul_u32_u24 {g3}, {T2_S}, {vt}
v_and_b32 {vt2}, 3, {w3}
v_lshl_add_u32 {g3}, {vt2}, 4, {g3}
v_lshlrev_b32 {w3}, 4, {w3}
s_lshl_b32 {sK[0]}, {sIdx}, 6
s_add_u32 {sK[0]}, {sK[0]}, {T2_B}
s_add_u32 {sK[1]}, {sK[0]}, {64*T2_S}
s_mul_i32 {sK[2]}, {sIdx}, 48
s_add_u32 {sK[2]}, {sK[2]}, {AT_B}
v_mul_u32_u24 {aAr}, 48, v0
''')
for k in range(3):
    a(f'v_add_u32 {fb}, {256*k}, v0' if k else f'v_mov_b32 {fb}, v0')
    a(f'v_mul_u32_u24 {aA[k]}, 683, {fb}'); a(f'v_lshrrev_b32 {aA[k]}, 11, {aA[k]}')
    a(f'v_mul_u32_u24 {aA[k]}, {AT_S - 48}, {aA[k]}'); a(f'v_lshl_add_u32 {aA[k]}, {fb}, 4, {aA[k]}')
a(f'''
v_mov_b32 {vZ}, 0
buffer_load_dword {hA}, {vZ}, {sWS}, {sE} offen sc1
''')
a.barrier()
V.release(fl, fg, f1, fp1, rv, tc, ts, *o, gt, GW, X)
def p3_prep():
    for q in range(2):
        for c in range(2): a(f'ds_read_b128 {B1[q][c]}, {aL} offset:{TB["P%s%d" % ("ab"[q] , c)]}')
    for blk in range(2):
        a(f'ds_read_b128 {T3c[blk]}, {aL} offset:{TB["T3c%d" % blk]}'); a(f'ds_read_b128 {T3s[blk]}, {aL} offset:{TB["T3s%d" % blk]}')
        for db in range(2): a(f'ds_read_b128 {B2[blk][db]}, {aL} offset:{TB["B2%d%d" % (blk, db)]}')
    gate_final()
    V.release(G)
    a(f'''
    s_cmp_lg_u32 {sWave}, 0
    s_cbranch_scc1 L_nq
    v_bfe_i32 {msk[1]}, {vg}, 1, 1
    v_not_b32 {msk[0]}, {msk[1]}
    ''')
    lg_keep = list(a.lg)
    for c in range(2):
        for r in range(4):
            a(f'v_and_b32 {B1[1][c][r]}, {msk[1]}, {B1[0][c][r]}'); a(f'v_and_b32 {B1[0][c][r]}, {msk[0]}, {B1[0][c][r]}')
    a('L_nq:')
    a(f'''
    s_cmp_lg_u32 {sWave}, 0
    s_cselect_b32 {sC[0]}, 0x3580, 0
    s_cselect_b32 {sC[1]}, 0xb5800000, 0
    s_movk_i32 {sC[2]}, 0x3580
    s_cmov_b32 {sC[2]}, 0x35800000
    v_bfe_i32 {vt}, {l15}, 0, 1
    v_and_b32 {vt}, 0x80008000, {vt}
    v_add_u32 {vt2}, -1, {vg}
    v_ashrrev_i32 {vt2}, 31, {vt2}
    v_xor_b32 {AN[0][0]}, 0x3580, {vt}
    v_xor_b32 {AN[0][1]}, {sC[0]}, {vt}
    v_xor_b32 {AN[1][0]}, {sC[1]}, {vt}
    v_xor_b32 {AN[1][1]}, {sC[2]}, {vt}
    v_and_b32 {AN[0][0]}, {vt2}, {AN[0][0]}
    v_and_b32 {AN[0][1]}, {vt2}, {AN[0][1]}
    v_and_b32 {AN[1][0]}, {vt2}, {AN[1][0]}
    v_and_b32 {AN[1][1]}, {vt2}, {AN[1][1]}
    v_mov_b64 {AN[0][2:4]}, 0
    v_mov_b64 {AN[1][2:4]}, 0
    v_mov_b64 {NB[2:4]}, 0
    v_and_b32 {vt}, 1, {vg}
    v_lshl_add_u32 {vt}, {vt}, 7, {l15}
    v_lshrrev_b32 {vt2}, 1, {vg}
    v_mul_u32_u24 {vt2}, 1408, {vt2}
    s_mul_i32 {sT}, {sWave}, 2816
    v_add_u32 {vt2}, {sT}, {vt2}
    v_mov_b32 {aN}, {sT}
    ''')
    for j in range(3):
        if j: a(f'v_add_u32 {vt}, 16, {vt}')
        a(f'v_mul_u32_u24 {aF[j]}, 171, {vt}'); a(f'v_lshrrev_b32 {aF[j]}, 9, {aF[j]}')
        a(f'v_add_u32 {fb}, {vt}, {aF[j]}'); a(f'v_lshl_add_u32 {aF[j]}, {fb}, 2, {vt2}')
    a(f'''
    v_bfe_u32 {vt}, {l15}, 1, 2
    v_xor_b32 {vt}, {vt}, {vg}
    v_lshlrev_b32 {vt}, 4, {vt}
    v_lshl_add_u32 {aYw}, {l15}, 6, {vt}
    s_lshl_b32 {sT}, {sWave}, 12
    v_add_u32 {aYw}, {sT}, {aYw}
    v_lshrrev_b32 {vt}, 3, v0
    v_xor_b32 {vt2}, {vt}, v0
    v_and_b32 {vt2}, 6, {vt2}
    v_and_b32 {fb}, 1, v0
    v_or_b32 {vt2}, {vt2}, {fb}
    v_lshlrev_b32 {vt2}, 3, {vt2}
    v_lshl_add_u32 {aYr}, {vt}, 6, {vt2}
    ''')
if opt('prep3first', 0): p3_prep()
L3 = TU
loads = [f'buffer_load_dwordx4 {L3[0:4]}, {g1}, {sWS}, {sK[0]} offen sc1', f'buffer_load_dwordx4 {L3[4:8]}, {g1}, {sWS}, {sK[1]} offen sc1',
         f'buffer_load_dwordx4 {L3[8:12]}, {g3}, {sWS}, {sK[0]} offen sc1']
aloads = [f'buffer_load_dwordx4 {AU[4*u:4*u+4]}, {aA[u]}, {sWS}, {sK[2]} offen sc1' for u in range(3)]
AIMG = CT + 16384
def hint_wait(name, soff):
    a(f'''
    s_mov_b64 exec, 1
    s_mov_b32 {sSpin}, 0
    s_setprio 0
    v_mov_b32 {vt2}, 0
    L_{name}:
    buffer_load_dword {vt}, {vt2}, {sWS}, {soff} offen sc1
    s_add_u32 {sSpin}, {sSpin}, 1
    s_waitcnt vmcnt(0)
    v_cmp_ne_u32 vcc, {sTag}, {vt}
    s_cbranch_vccz L_{name}ok
    s_sleep {opt('slc', 4)}
    s_cmp_lt_u32 {sSpin}, {SPIN}
    s_cbranch_scc1 L_{name}
    L_{name}ok:
    s_setprio 3
    s_mov_b64 exec, -1
    ''')
a('s_waitcnt vmcnt(0)')
a(f'''
s_cmp_lt_u32 {sGrp}, 22
s_cbranch_scc1 L_t2go
s_mul_i32 {sT}, {sW8}, 22
s_add_u32 {sT}, {sT}, {sGrp}
s_sub_u32 {sT}, {sT}, 12
s_mul_i32 {sT}, {sT}, {T2_S}
s_add_u32 {sT}, {sT}, {T2_B + 16384}
''')
hint_wait('h2', sT)
a('L_t2go:')
stamp()
emit(loads)
a(f'''
v_cmp_ne_u32 vcc, {sTag}, {hA}
s_mov_b32 {sE2}, 1
s_cbranch_vccnz L_alate
s_mov_b32 {sE2}, 0
''')
emit(aloads)
a('s_branch L_aiss'); a('L_alate:')
a(f'buffer_load_dword {hA}, {vZ}, {sWS}, {sE} offen sc1')
a('L_aiss:')
a.vm = []
if not opt('prep3first', 0): p3_prep()
a('s_setprio 3')
a(f's_cmp_eq_u32 {sE2}, 0'); a('s_cbranch_scc1 L_achk'); a('s_waitcnt vmcnt(0)'); a('L_achk:')
check_retry(loads, [L3[3], L3[7], L3[11]], vt, opt('sl2', 2), first=3, prio=3)
stamp(); stamp('z-got')
a(f'ds_write_b128 {aRd}, {L3[0:4]} offset:{T2IN}')
a(f'ds_write_b128 {aRd}, {L3[4:8]} offset:{T2IN + 4096}')
a(f'ds_write_b128 {w3}, {L3[8:12]} offset:{T2IN}')
a(f'''
v_cmp_ne_u32 vcc, {sTag}, {hA}
s_cmp_eq_u32 {sE2}, 0
s_cbranch_scc1 L_a2
s_cbranch_vccnz L_a2
s_mov_b32 {sE2}, 0
''')
emit(aloads)
a('L_a2:')
a.vm = []
stamp('z-prebar')
a.barrier()
stamp('z-bar')
AF = [L3[0:4], L3[4:8]]
for blk in range(2):
    for r in range(4):
        off = 16 * blk + 32 * r
        a(f'ds_read_b32 {AF[blk][r]}, {aF[(off % 48) // 16]} offset:{T2IN + 256 * (off // 48)}')
a(f'ds_read_b32 {NB[0]}, {aN} offset:{T2IN + 341*4}')
a(f'ds_read_b32 {NB[1]}, {aN} offset:{T2IN + 341*4 + 1408}')
Dre = [[V.alloc(4, 2) for b in range(2)] for q in range(2)]; Dim = [[V.alloc(4, 2) for b in range(2)] for q in range(2)]
VV = [V.alloc(4, 2) for b in range(2)]; Y = [[V.alloc(4, 2) for db in range(2)] for q in range(2)]
for blk in range(2):
    for q in range(2):
        a(mf16(Dre[q][blk], AF[blk], B1[q][0], 0)); a(mf16(Dim[q][blk], AF[blk], B1[q][1], 0))
stamp('z-st1')
gr = []
for q in range(2):
    for blk in range(2):
        tw = twiddle(Dre[q][blk], Dim[q][blk], T3c[blk], T3s[blk], tre, tim, VV[blk], +1)
        if blk == 0: tw = tw[:8] + [mf16(Y[q][db], AN[q], NB, 0) for db in range(2)] + tw[8:]
        elif q == 1: tw = tw[:8] + [f'ds_write_b128 {aYw}, {Y[0][db]} offset:{YROW + 1024*db}' for db in range(2)] + tw[8:]
        gr.append((tw, [mf16(Y[q][db], VV[blk], B2[blk][db], Y[q][db]) for db in range(2)]))
emit(pipe(gr))
stamp(); stamp('z-st2')
if OPT.get('only') == 'fft': a('s_waitcnt vmcnt(0)')
else:
    a(f's_cmp_eq_u32 {sE2}, 0'); a('s_cbranch_scc1 L_ago')
    hint_wait('h3', sE)
    emit(aloads)
    a('L_ago:')
    check_retry(aloads, [AU[3], AU[7], AU[11]], vt, opt('sl3', 4), prio=3)
stamp(); stamp('z-at')
for u in range(3): a(f'ds_write_b128 {aRd}, {AU[4*u:4*u+4]} offset:{AIMG + 4096*u}')
for db in range(2): a(f'ds_write_b128 {aYw}, {Y[1][db]} offset:{YROW + 2048 + 1024*db}')
stamp('z-pre2')
a.barrier()
stamp('z-bar2')
Rr = [V.alloc(2, 2) for _ in range(8)]
for q in (0, 1, 4, 5): a(f'ds_read_b64 {Rr[q]}, {aYr} offset:{YROW + 2048*q}')
for u in range(3): a(f'ds_read_b96 {AU[4*u:4*u+3]}, {aAr} offset:{AIMG + 16*u}')
for q in (2, 6, 3, 7): a(f'ds_read_b64 {Rr[q]}, {aYr} offset:{YROW + 2048*q}')
def ga(s):
    a(f'v_dot2_f32_bf16 {GA[s][0]}, {AU[s + s//3]}, {sGl[s]}, 0'); a(f'v_dot2_f32_bf16 {GA[s][1]}, {AU[s + s//3]}, {sG[s]}, 0')
R0, R4, A1, Bq1, A2, Bq2, A3, Bq3 = Rr
E = [V.alloc(2, 2) for _ in range(4)]; e0 = V.alloc(2, 2); e1 = V.alloc(2, 2); Oo = [V.alloc(2, 2) for _ in range(4)]; of = V.alloc(8)
yy = Rr
def fin(s):
    a(f'v_pk_fma_f32 {yy[s]}, {yy[s]}, {sOm[s & 6:(s & 6) + 2]}, {GA[s]} {"op_sel:[0,1,0]" if s & 1 else "op_sel_hi:[1,0,1]"}')
def fin2(s):
    a(f'v_cvt_pk_bf16_f32 {of[s]}, {yy[s][0]}, {yy[s][1]}')
    a(f'global_store_dword {vXo[s]}, {of[s]}, {sP[10:12]} {OPT.get("outfl", "").replace("+", " ")}')
a(f'''
v_pk_add_f32 {e0}, {R0}, {R4}
v_pk_add_f32 {e1}, {R0}, {R4} {NEG1}
v_pk_add_f32 {E[0]}, {e0}, {A2}
v_pk_add_f32 {E[2]}, {e0}, {A2} {NEG1}
v_pk_add_f32 {E[1]}, {e1}, {Bq2}
v_pk_add_f32 {E[3]}, {e1}, {Bq2} {NEG1}
''')
for s in (0, 4, 2, 6): ga(s)
a(f'''
v_pk_add_f32 {Oo[0]}, {A1}, {A3}
v_pk_add_f32 {e0}, {A1}, {A3} {NEG1}
v_pk_add_f32 {yy[0]}, {E[0]}, {Oo[0]}
v_pk_add_f32 {yy[4]}, {E[0]}, {Oo[0]} {NEG1}
''')
fin(0); fin(4)
a(f'v_pk_add_f32 {Oo[2]}, {Bq1}, {Bq3} {NEG1}'); a(f'v_pk_add_f32 {e1}, {Bq1}, {Bq3}')
fin2(0); fin2(4)
a(f'''
v_pk_add_f32 {yy[2]}, {E[2]}, {Oo[2]}
v_pk_add_f32 {yy[6]}, {E[2]}, {Oo[2]} {NEG1}
v_pk_add_f32 {Oo[1]}, {e1}, {e0}
v_pk_add_f32 {Oo[3]}, {e1}, {e0} {NEG1}
''')
fin(2); fin(6)
for s in (1, 5, 3, 7): ga(s)
a(f'''
v_pk_fma_f32 {yy[1]}, {Oo[1]}, {sHh}, {E[1]} op_sel_hi:[1,0,1]
v_pk_fma_f32 {yy[5]}, {Oo[1]}, {sHh}, {E[1]} op_sel_hi:[1,0,1] neg_lo:[1,0,0] neg_hi:[1,0,0]
''')
fin2(2); fin2(6)
a(f'''
v_pk_fma_f32 {yy[3]}, {Oo[3]}, {sHh}, {E[3]} op_sel_hi:[1,0,1]
v_pk_fma_f32 {yy[7]}, {Oo[3]}, {sHh}, {E[3]} op_sel_hi:[1,0,1] neg_lo:[1,0,0] neg_hi:[1,0,0]
''')
for s in (1, 5, 3, 7): fin(s)
for s in (1, 5, 3, 7): fin2(s)
stamp(); stamp('z-end')
fixwait()
a(f'''
s_or_b32 {sT}, s2, {sWave}
s_cmp_lg_u32 {sT}, 0
s_cbranch_scc1 L_fdone
v_mov_b32 {vt}, 0
s_mov_b64 exec, 1
buffer_store_dword {vTag}, {vt}, {sWS}, 0 offen
s_mov_b64 exec, -1
L_fdone:
''')
if STAMP:
    a('s_waitcnt vmcnt(0)'); stamp()
stamp_flush()
a('s_endpgm')
flush_tails()
nf = nstamp[0]
vmax = V.hi

exec(open('gen7_conv.py').read())

from asmlib import align_pass
if opt('al', 1): print('align', align_pass(a))
hdr = open('gated_mix__ssm_conv_s4__spectral_gfnet__prompt.s.ref').read().split('; Override launch')[0]
src = hdr + f'''; @launch grid=(512,1,1) block=(256,1,1) lds={LDS_BYTES}
; stampinfo ({nf}, {nstamp[0]}, {list(range(p2start, p2end))}, 4, {ST_B})
; Generated by dev/gen7.py (gen4 gen5 layout). One launch, 512 workgroups: ids 0..255 run the 2-D FFT filter path (three phases joined by
; tagged 16-byte hand-off units in d_ws), ids 256..511 build the S4 kernel and run the causal convolution on MFMA.
.amdgcn_target "amdgcn-amd-amdhsa--gfx950"
.text
.globl {KNAME}
.p2align 8
.type {KNAME},@function
{KNAME}:
''' + a.text() + f'''.section .rodata,"a"
.p2align 6
.amdhsa_kernel {KNAME}
  .amdhsa_next_free_vgpr {NV}
  .amdhsa_next_free_sgpr {102 if opt('fix') or STAMP else max(smax, 16)}
  .amdhsa_accum_offset {NV}
  .amdhsa_group_segment_fixed_size 0
  .amdhsa_kernarg_size 128
  .amdhsa_user_sgpr_count 2
  .amdhsa_user_sgpr_kernarg_segment_ptr 1
  .amdhsa_system_sgpr_workgroup_id_x 1
.end_amdhsa_kernel
'''
open(sys.argv[1], 'w').write(src)
print(snames)
print('vgpr hi', vmax, 'sgpr hi', smax, 'nops', a.nnop, 'lines', len(a.out))
```

```python
import sys
from asmlib import Ins
lines=open(sys.argv[1]).read().split('\n')
i0=[i for i,l in enumerate(lines) if l.startswith('gated_mix') and l.endswith(':')][0]
sec='entry'; cnt={}; order=[]; nb=0
for l in lines[i0+1:]:
    s=l.strip()
    if s.startswith(".section") or s.startswith(".p2align 10"): break
    if not s or s.startswith(';'): continue
    if s.endswith(':'):
        sec=s; continue
    ins=Ins(s)
    if sec not in cnt: cnt[sec]=dict(valu=0,trans=0,mfma=0,ds=0,vmem=0,salu=0,nop=0); order.append(sec)
    k='mfma' if ins.mfma else 'trans' if ins.trans else 'valu' if ins.valu else 'ds' if ins.ds else 'vmem' if ins.vmem else 'nop' if ins.op=='s_nop' else 'salu'
    cnt[sec][k]+=1
    if ins.op=='s_barrier':
        nb+=1; sec=sec.split('+')[0]+f'+b{nb}'
for s in order: print(f'{s:22s}', ' '.join(f'{k}={v:3d}' for k,v in cnt[s].items()), 'tot', sum(cnt[s].values()))
```
